```python
import torch

def _softmax(x, axis=-1):
    return torch.softmax(x, dim=axis)
def _gelu(x):
    return torch.nn.functional.gelu(x, approximate="tanh")
def _silu(x):
    return torch.nn.functional.silu(x)
def _sigmoid(x):
    return torch.sigmoid(x)
def _layernorm(x, axis=-1, eps=1e-5):
    m = x.mean(dim=axis, keepdim=True)
    v = x.var(dim=axis, keepdim=True, unbiased=False)
    return (x - m) / torch.sqrt(v + eps)
def _scatter_add(tgt, idx, src, axis=0):
    return tgt.clone().index_add_(axis, idx, src)
def _segment_sum(src, seg, n):
    out = torch.zeros((n,) + src.shape[1:], dtype=src.dtype)
    return out.index_add_(0, seg, src)
def _pad(x, pw):
    flat = tuple(v for pair in reversed(pw) for v in pair)
    return torch.nn.functional.pad(x, flat)

kernel_name = 'sequential_preLN__ssm_conv_h3__glu_gated_geglu__prompt'

def setup_inputs():

    _w = (lambda a: (lambda t: t.to(torch.bfloat16) if t.is_floating_point() else t)(torch.as_tensor(a)))
    def _A_setup():
        B, S, D = 1, 2048, 576
        ks = 4
        return {
            "q": _w((lambda *s: torch.randn(*s, dtype=torch.bfloat16) * 0.05)(B, S, D)),
            "k": _w((lambda *s: torch.randn(*s, dtype=torch.bfloat16) * 0.2)(B, S, D)),
            "v": _w((lambda *s: torch.randn(*s, dtype=torch.bfloat16) * 0.2)(B, S, D)),
            "shift_k": _w((lambda *s: torch.randn(*s, dtype=torch.bfloat16) * 0.2)(D, ks) * 0.5),
            "ssm_k": _w((lambda *s: torch.randn(*s, dtype=torch.bfloat16) * 0.4)(D, S) * (1.0 / S ** 0.5)),
            "ssm_D": _w((lambda *s: torch.randn(*s, dtype=torch.bfloat16) * 0.2)(D)),
        }
    _A_in = _A_setup()

    def _B_setup():
        B, S, Dm, Df = 1, 2048, 576, 4608
        return {
            "x": _w((lambda *s: torch.randn(*s, dtype=torch.bfloat16) * 0.05)(B, S, Dm)),
            "w_gate": _w((lambda *s: torch.randn(*s, dtype=torch.bfloat16) * 0.4)(Dm, Df) * (Dm ** -0.5)),
            "w_up": _w((lambda *s: torch.randn(*s, dtype=torch.bfloat16) * 0.4)(Dm, Df) * (Dm ** -0.5)),
            "w_down": _w((lambda *s: torch.randn(*s, dtype=torch.bfloat16) * 0.4)(Df, Dm) * (Df ** -0.5)),
        }
    _B_in = _B_setup()

    return {
        "A_q": _A_in["q"],
        "A_k": _A_in["k"],
        "A_v": _A_in["v"],
        "A_shift_k": _A_in["shift_k"],
        "A_ssm_k": _A_in["ssm_k"],
        "A_ssm_D": _A_in["ssm_D"],
        "B_x": _B_in["x"],
        "B_w_gate": _B_in["w_gate"],
        "B_w_up": _B_in["w_up"],
        "B_w_down": _B_in["w_down"],
    }

def reference(A_q, A_k, A_v, A_shift_k, A_ssm_k, A_ssm_D, B_x, B_w_gate, B_w_up, B_w_down):
    def _A_ref(q, k, v, shift_k, ssm_k, ssm_D):
        B, S, D = q.shape
        ks = shift_k.shape[-1]
        k_pad = _pad(k, ((0, 0), (ks - 1, 0), (0, 0)))
        k_shift = torch.zeros_like(k)
        for t in range(ks):
            k_shift = k_shift + k_pad[:, t:t + S, :] * shift_k[:, ks - 1 - t][None, None, :]
        kv = k_shift * v
        L = 2 * S
        kv_pad = _pad(kv, ((0, 0), (0, S), (0, 0)))
        kf_pad = _pad(ssm_k, ((0, 0), (0, S)))
        kv_f = (lambda x, axes=(-2,-1): torch.fft.rfft2(x.float(), dim=axes))(kv_pad[:, None, :, :], axes=(1, 2))
        kf_f = (lambda x, axes=(-2,-1): torch.fft.rfft2(x.float(), dim=axes))(kf_pad[:, None, :], axes=(1, 2))
        kf_f = (lambda x, *d: x.permute(*d))(kf_f, 1, 2, 0)
        y_f = kv_f * kf_f[None, :, :, :]
        y = (lambda x, s, axes=(-2,-1): torch.fft.irfft2(x, s=s, dim=axes).to(torch.bfloat16))(y_f, (1, L), axes=(1, 2))[:, 0, :S, :]
        y = y + kv * ssm_D[None, None, :]
        return q * y

    def _B_ref(x, w_gate, w_up, w_down):
        g = torch.einsum("bsd,df->bsf", x, w_gate)
        u = torch.einsum("bsd,df->bsf", x, w_up)
        h = _gelu(g) * u
        return torch.einsum("bsf,fd->bsd", h, w_down)

    x = A_q
    h = x + _A_ref(_layernorm(x, axis=-1), A_k, A_v, A_shift_k, A_ssm_k, A_ssm_D)
    h2 = h + _B_ref(_layernorm(h, axis=-1), B_w_gate, B_w_up, B_w_down)
    return h2
```

```python
import re, os

def _regs(tok):
    tok = tok.strip()
    neg = tok.lstrip('-')
    if neg.startswith('abs(') or neg.startswith('|'):
        neg = neg.replace('abs(', '').replace(')', '').replace('|', '')
    m = re.fullmatch(r'([vas])(\d+)', neg)
    if m: return [(m.group(1), int(m.group(2)))]
    m = re.fullmatch(r'([vas])\[(\d+):(\d+)\]', neg)
    if m: return [(m.group(1), i) for i in range(int(m.group(2)), int(m.group(3)) + 1)]
    if neg == 'vcc': return [('vcc', 0)]
    if neg == 'exec': return [('exec', 0)]
    if neg == 'm0': return [('m0', 0)]
    return []

TRANS = ('v_exp_f32', 'v_log_f32', 'v_rcp_f32', 'v_rsq_f32', 'v_sqrt_f32', 'v_sin_f32', 'v_cos_f32')

class Ins:
    __slots__ = ('text', 'op', 'dst', 'src', 'kind', 'passes', 'srcC', 'is_dpp', 'store_data', 'wide')
    def __init__(self, text):
        self.text = text
        t = text.split(';')[0].strip()
        parts = t.split(None, 1)
        self.op = parts[0] if parts else ''
        rest = parts[1] if len(parts) > 1 else ''
        ops = []
        cur = ''
        depth = 0
        for ch in rest:
            if ch == '[': depth += 1
            if ch == ']': depth -= 1
            if ch == ',' and depth == 0:
                ops.append(cur.strip()); cur = ''
            else:
                cur += ch
        if cur.strip(): ops.append(cur.strip())
        mods = ''
        if ops:
            l = ops[-1].split(None, 1)
            ops[-1] = l[0]
            mods = l[1] if len(l) > 1 else ''
        op = self.op
        self.dst = []; self.src = []; self.kind = 'other'; self.passes = 0; self.srcC = []
        self.is_dpp = ('row_' in mods or 'quad_perm' in mods or 'wave_' in mods or op.endswith('_dpp'))
        self.store_data = []; self.wide = False
        R = lambda i: _regs(ops[i]) if i < len(ops) else []
        if op.startswith('v_mfma'):
            self.kind = 'mfma'
            self.passes = 8 if '32x32x16' in op else 4
            self.dst = R(0); self.src = R(1) + R(2); self.srcC = R(3)
        elif op.startswith('v_cmp'):
            self.kind = 'valu'
            self.dst = R(0); self.src = R(1) + R(2)
            if op.startswith('v_cmpx'): self.dst += [('exec', 0)]
        elif op.startswith('v_permlane') and 'swap' in op:
            self.kind = 'permlane'
            self.dst = R(0) + R(1); self.src = R(0) + R(1)
        elif op in ('v_readfirstlane_b32', 'v_readlane_b32'):
            self.kind = 'readlane'
            self.dst = R(0); self.src = R(1) + R(2)
        elif op.startswith('v_add_co') or op.startswith('v_sub_co') or op.startswith('v_addc_co') or op.startswith('v_subb_co'):
            self.kind = 'valu'
            self.dst = R(0) + R(1); self.src = R(2) + R(3) + R(4)
        elif op.startswith('v_'):
            self.kind = 'trans' if op.replace('_e32', '').replace('_e64', '') in TRANS else 'valu'
            self.dst = R(0)
            for i in range(1, len(ops)): self.src += R(i)
            if op.startswith('v_fmac') or op.startswith('v_pk_fmac') or op.startswith('v_dot2c') or op.startswith('v_writelane'):
                self.src += R(0)
            if op.startswith('v_cndmask') and len(ops) == 3: self.src += [('vcc', 0)]
        elif op.startswith('ds_read') or op.startswith('ds_bpermute') or op.startswith('ds_swizzle'):
            self.kind = 'dsread'
            self.dst = R(0)
            for i in range(1, len(ops)): self.src += R(i)
        elif op.startswith('ds_write'):
            self.kind = 'dswrite'
            for i in range(len(ops)): self.src += R(i)
        elif op.startswith('buffer_load') or op.startswith('global_load'):
            if ' lds' in (' ' + mods) or op.startswith('global_load_lds'):
                self.kind = 'ldsdma'
                for i in range(len(ops)): self.src += R(i)
                self.src += [('m0', 0)]
            else:
                self.kind = 'vmemload'
                self.dst = R(0)
                for i in range(1, len(ops)): self.src += R(i)
        elif op.startswith('buffer_store') or op.startswith('global_store') or op.startswith('buffer_atomic') or op.startswith('global_atomic'):
            self.kind = 'vmemstore'
            for i in range(len(ops)): self.src += R(i)
            self.store_data = R(0) if op.startswith('buffer') else R(1)
            self.wide = 'x4' in op or 'x3' in op
        elif op.startswith('s_'):
            self.kind = 'salu'
            if op.startswith('s_cmp') or op.startswith('s_cbranch') or op in ('s_branch', 's_barrier', 's_waitcnt', 's_nop', 's_endpgm', 's_setprio', 's_sleep'):
                for i in range(len(ops)): self.src += R(i)
            else:
                self.dst = R(0)
                for i in range(1, len(ops)): self.src += R(i)
                if 'saveexec' in op: self.dst += [('exec', 0)]

    def states(self):
        if self.op == 's_nop':
            return int(self.text.split()[1], 0) + 1
        return 1

VALUK = ('valu', 'trans', 'permlane', 'readlane')
def required(p, c):
    need = 0
    pd = set(p.dst)
    if p.kind in VALUK:
        vd = {r for r in pd if r[0] in 'va'}
        sd = {r for r in pd if r[0] in ('s', 'vcc')}
        if c.kind == 'mfma' and vd & set(c.src + c.srcC): need = max(need, 2)
        if c.kind == 'readlane' and vd & set(c.src): need = max(need, 1)
        if c.kind == 'permlane' and vd & set(c.src): need = max(need, 2)
        if c.is_dpp and vd & set(c.src): need = max(need, 2)
        if p.kind == 'trans' and c.kind in VALUK + ('mfma',) and vd & set(c.src): need = max(need, 1)
        if p.kind == 'trans' and c.kind in ('dswrite', 'vmemstore', 'vmemload', 'dsread', 'ldsdma') and vd & set(c.src): need = max(need, 1)
        if sd:
            if c.kind in ('vmemload', 'vmemstore', 'ldsdma') and sd & set(c.src): need = max(need, 5)
            if c.kind in VALUK and sd & set(c.src): need = max(need, 4 if c.kind == 'readlane' else 2)
            if c.kind == 'salu' and sd & set(c.src): need = max(need, 1)
        if ('exec', 0) in pd:
            if c.kind == 'mfma': need = max(need, 4)
            if c.kind in ('readlane', 'permlane'): need = max(need, 4)
            if c.is_dpp: need = max(need, 5)
    if p.kind == 'salu':
        if ('m0', 0) in pd and c.kind == 'ldsdma': need = max(need, 1)
    if p.kind == 'mfma':
        n_ab = {4: 8, 8: 12}[p.passes]
        n_c = {4: 6, 8: 10}[p.passes]
        if c.kind == 'mfma':
            if pd & set(c.src): need = max(need, n_ab)
            if pd & set(c.srcC):
                if not (c.srcC == p.dst and c.passes == p.passes): need = max(need, n_c)
            elif pd & set(c.dst): need = max(need, n_c)
        else:
            if pd & set(c.src + c.dst): need = max(need, n_ab)
        if c.kind in VALUK + ('dsread', 'vmemload') and set(p.srcC) & set(c.dst):
            need = max(need, {4: 3, 8: 7}[p.passes])
    if p.kind == 'vmemstore' and p.wide:
        if set(p.store_data) & set(c.dst): need = max(need, 2)
    return need

class Asm:
    def __init__(self):
        self.out = []
    def raw(self, s):
        self.out.append(s)
    def __call__(self, s):
        for line in s.strip('\n').split('\n'):
            l = line.strip()
            if not l or l.startswith(';'):
                continue
            if l.endswith(':') or l.startswith('.'):
                self.out.append(l)
            else:
                self.out.append(Ins(l))
    def label(self, l):
        self.out.append(l + ':')
    def finish(self):
        res = []
        hist = []
        nnop = 0
        for it in self.out:
            if isinstance(it, str):
                res.append(it)
                continue
            need = 0
            dist = 0
            for p in reversed(hist):
                r = required(p, it)
                if r > dist: need = max(need, r - dist)
                dist += p.states()
                if dist > 20: break
            while need > 0:
                k = min(need, 16)
                nop = Ins(f's_nop {k-1}')
                res.append('    ' + nop.text); hist.append(nop); nnop += 1
                need -= k
            res.append('    ' + it.text)
            hist.append(it)
            if len(hist) > 40: hist = hist[-40:]
        self.nnop = nnop
        return '\n'.join(res) + '\n'

def kd(name, vgpr, sgpr, accum):
    return f"""
.section .rodata,"a"
.p2align 6
.amdhsa_kernel {name}
  .amdhsa_next_free_vgpr {vgpr}
  .amdhsa_next_free_sgpr {max(sgpr, 102) if os.environ.get('STAMPS') else sgpr}
  .amdhsa_accum_offset {accum}
  .amdhsa_group_segment_fixed_size 0
  .amdhsa_kernarg_size 104
  .amdhsa_user_sgpr_count 2
  .amdhsa_user_sgpr_kernarg_segment_ptr 1
  .amdhsa_system_sgpr_workgroup_id_x 1
  .amdhsa_float_denorm_mode_32 3
.end_amdhsa_kernel
.text
"""

def khead(name):
    return f""".globl {name}
.p2align 8
.type {name},@function
{name}:"""
```

```python
from asmlib import Asm, kd, khead
import gen as G
from gen import KA, srd, f32, S, D, F
import math

STG = 37120
UPOFF = 18560
K4_SCR = 4 * STG
K4_LDS = K4_SCR + 1024

def k4():
    a = Asm()
    a.raw(khead('gemm1_kernel'))
    ACC, TOK, AF, DS_ = 112, 64, 40, 24
    NAF = 6; PF = 5
    a(f"""
    s_cmp_ge_u32 s2, 256
    s_cbranch_scc1 K4_done
    s_load_dwordx4 s[4:7], s[0:1], {KA['wg']}
    s_load_dwordx2 s[10:11], s[0:1], {KA['ws']}
    v_lshrrev_b32 v1, 6, v0
    v_and_b32 v0, 63, v0
    v_readfirstlane_b32 s3, v1
    s_and_b32 s12, s2, 7
    s_lshr_b32 s13, s2, 3
    s_lshl_b32 s12, s12, 2
    s_and_b32 s14, s13, 3
    s_add_u32 s12, s12, s14
    s_lshr_b32 s13, s13, 2
    s_lshl_b32 s13, s13, 3
    s_add_u32 s13, s13, s3
    s_and_b32 s14, s3, 3
    s_mul_i32 s15, s14, 5
    s_cmp_eq_u32 s14, 3
    s_cselect_b32 s15, 14, s15
    s_waitcnt lgkmcnt(0)
    s_cmp_ge_u32 s3, 4
    s_cselect_b32 s4, s6, s4
    s_cselect_b32 s5, s7, s5
    s_cselect_b32 s16, {UPOFF}, 0
    """)
    srd(a, 20, 4, G.SZ_W)
    srd(a, 24, 10, G.SZ_HN, G.WS_HN)
    srd(a, 28, 10, G.SZ_HH, G.WS_HH)
    a(f"""
    s_lshl_b32 s17, s15, 10
    s_add_u32 s16, s16, s17
    s_lshl_b32 s17, s15, 6
    s_movk_i32 s18, 9216
    """)
    for i in range(5):
        a(f"v_add_u32 v11, s17, v0")
        if i: a(f"v_add_u32 v11, {64*i}, v11")
        a(f"v_mul_u32_u24 v12, 3641, v11")
        a(f"v_lshrrev_b32 v12, 16, v12")
        a(f"v_mul_u32_u24 v13, 18, v12")
        a(f"v_sub_u32 v13, v11, v13")
        a(f"v_mul_u32_u24 v12, s18, v12")
        a(f"v_lshl_add_u32 v{1+i}, v13, 4, v12")
        if 0 < i < 4: a(f"v_subrev_u32 v{1+i}, {1024*i}, v{1+i}")
    a(f"""
    s_cmp_ge_u32 s14, 2
    s_cselect_b32 s19, 1, 0
    v_mov_b32 v11, 0x7f000000
    s_cselect_b64 vcc, -1, 0
    v_cndmask_b32 v5, v5, v11, vcc
    s_mul_i32 s32, s12, 288
    s_mul_i32 s33, s13, {36*1024}
    v_lshlrev_b32 v8, 4, v0
    s_mov_b32 s34, 0
    """)
    def dma_instrs():
        L = []
        L.append(["s_add_u32 m0, s34, s16",
                  "buffer_load_dwordx4 v1, s[20:23], s32 offen lds"])
        for i in range(1, 4):
            L.append([f"buffer_load_dwordx4 v{1+i}, s[20:23], s32 offen offset:{1024*i} lds"])
        L.append(["s_add_u32 s35, m0, 4096",
                  "s_cmp_eq_u32 s19, 1",
                  f"s_cselect_b32 m0, {K4_SCR}, s35",
                  "buffer_load_dwordx4 v5, s[20:23], s32 offen lds",
                  f"s_add_u32 s32, s32, {64*9216}",
                  f"s_add_u32 s34, s34, {STG}",
                  f"s_cmp_eq_u32 s34, {4*STG}",
                  "s_cselect_b32 s34, 0, s34"])
        return L
    def tokreg(kap):
        r = TOK + 4 * (kap % 12)
        return f"v[{r}:{r+3}]"
    def tokload(kap):
        L = [f"buffer_load_dwordx4 {tokreg(kap)}, v8, s[24:27], s33 offen offset:{1024*(kap%4)}"]
        if kap % 4 == 3: L.append("s_add_u32 s33, s33, 4096")
        return L
    for s in range(3):
        for grp in dma_instrs():
            for l in grp: a(l)
        for kap in range(4 * s, 4 * s + 4):
            for l in tokload(kap): a(l)
    a(f"""
    v_bfe_u32 v11, v0, 1, 1
    s_movk_i32 s17, {UPOFF}
    v_mul_u32_u24 v6, s17, v11
    v_lshrrev_b32 v11, 5, v0
    v_bfe_u32 v12, v0, 2, 2
    v_lshl_add_u32 v11, v11, 3, v12
    v_mul_u32_u24 v11, 288, v11
    v_add_u32 v6, v6, v11
    v_and_b32 v11, 1, v0
    v_lshl_add_u32 v6, v11, 4, v6
    v_bfe_u32 v11, v0, 4, 1
    v_lshl_add_u32 v6, v11, 3, v6
    v_mov_b32 v7, v6
    s_mov_b32 s36, 0
    """)
    a(f"""
    v_bfe_u32 v11, v0, 4, 1
    s_mov_b32 s17, 147456
    v_mul_lo_u32 v9, s17, v11
    v_lshrrev_b32 v11, 5, v0
    v_lshl_add_u32 v9, v11, 8, v9
    v_and_b32 v11, 15, v0
    v_lshl_add_u32 v9, v11, 4, v9
    s_mul_i32 s37, s13, 294912
    s_mul_i32 s17, s12, 4608
    s_add_u32 s37, s37, s17
    v_mov_b32 v10, {f32(-2*math.log2(math.e)*math.sqrt(2/math.pi)*0.044715)}
    """)
    for i in range(144):
        a(f"v_mov_b32 v{ACC+i}, 0")
    def afreg(j):
        r = AF + 4 * (j % NAF)
        return r
    def trread(j, base, off):
        r = afreg(j)
        return [f"ds_read_b64_tr_b16 v[{r}:{r+1}], {base} offset:{off}",
                f"ds_read_b64_tr_b16 v[{r+2}:{r+3}], {base} offset:{off+4*288}"]
    def froff(ks, t):
        return 16 * ks * 288 + 32 * t
    a("s_waitcnt vmcnt(22)")
    a("s_barrier")
    for j in range(PF):
        for l in trread(j, 'v7', froff(j // 9, j % 9)): a(l)
    a("s_mov_b32 s38, 0")
    a.label('K4_loop')
    def stage(sidx, do_loads, next_kind):
        a(f"s_waitcnt vmcnt({13 if do_loads else 4})")
        a("s_barrier")
        dm = dma_instrs() if do_loads else []
        for j in range(36):
            ks, t = divmod(j, 9)
            kap = 4 * sidx + ks
            a(f"s_waitcnt lgkmcnt({2*(PF-1)})")
            r = afreg(j)
            a(f"v_mfma_f32_32x32x16_bf16 v[{ACC+16*t}:{ACC+16*t+15}], v[{r}:{r+3}], {tokreg(kap)}, v[{ACC+16*t}:{ACC+16*t+15}]")
            jn = j + PF
            if jn < 36:
                for l in trread(jn, 'v7', froff(jn // 9, jn % 9)): a(l)
            else:
                jj = jn - 36
                if next_kind == 'k':
                    if jj == 0:
                        a(f"s_add_u32 s36, s36, {STG}")
                        a(f"s_cmp_eq_u32 s36, {4*STG}")
                        a("s_cselect_b32 s36, 0, s36")
                        a("v_add_u32 v7, s36, v6")
                    for l in trread(jn, 'v7', froff(jj // 9, jj % 9)): a(l)
                else:
                    if jj == 0:
                        a(f"v_add_u32 v7, {3*STG}, v6")
                    base, off = tail_addr(jj)
                    for l in trread(jn, base, off): a(l)
            if dm and j % 2 == 0:
                for l in dm.pop(0): a(l)
            if do_loads and t == 8:
                for l in tokload(kap + 12): a(l)
    def tail_addr(jj):
        t, kk = divmod(jj, 8)
        if kk < 4: return 'v7', froff(kk, t)
        return 'v6', froff(kk - 4, t)
    for s in range(3):
        stage(s, True, 'k')
    a("s_add_u32 s38, s38, 1")
    a("s_cmp_lt_u32 s38, 2")
    a("s_cbranch_scc1 K4_loop")
    def stage6():
        for j in range(36):
            ks, t = divmod(j, 9)
            kap = ks
            if j == 27:
                a("s_waitcnt vmcnt(0)")
                a("s_barrier")
            a(f"s_waitcnt lgkmcnt({2*(PF-1)})")
            r = afreg(j)
            a(f"v_mfma_f32_32x32x16_bf16 v[{ACC+16*t}:{ACC+16*t+15}], v[{r}:{r+3}], {tokreg(kap)}, v[{ACC+16*t}:{ACC+16*t+15}]")
            jn = j + PF
            if jn < 36:
                for l in trread(jn, 'v7', froff(jn // 9, jn % 9)): a(l)
            else:
                jj = jn - 36
                if jj == 0:
                    a(f"v_add_u32 v7, {3*STG}, v6")
                base, off = tail_addr(jj)
                for l in trread(jn, base, off): a(l)
    a("s_waitcnt vmcnt(18)")
    stage6()
    for jj in range(72):
        t, kk = divmod(jj, 8)
        kap = 28 + kk
        rem = min(PF - 1, 71 - jj)
        a(f"s_waitcnt lgkmcnt({2*rem})")
        r = afreg(jj)
        dst = f"v[{DS_}:{DS_+15}]" if kk == 7 else f"v[{ACC+16*t}:{ACC+16*t+15}]"
        a(f"v_mfma_f32_32x32x16_bf16 {dst}, v[{r}:{r+3}], {tokreg(kap)}, v[{ACC+16*t}:{ACC+16*t+15}]")
        jn = jj + PF
        if jn < 72:
            base, off = tail_addr(jn)
            for l in trread(jn, base, off): a(l)
        if kk == 7:
            a("s_call_b64 s[40:41], K4_epi")
    a("s_endpgm")
    a.label('K4_epi')
    a("s_nop 10")
    c1 = f32(-2 * math.log2(math.e) * math.sqrt(2 / math.pi))
    gr = [DS_ + 0, DS_ + 1, DS_ + 2, DS_ + 3, DS_ + 8, DS_ + 9, DS_ + 10, DS_ + 11]
    ur = [x + 4 for x in gr]
    T = 12
    for e in range(8): a(f"v_mul_f32 v{T+e}, v{gr[e]}, v{gr[e]}")
    for e in range(8): a(f"v_fmaak_f32 v{T+e}, v10, v{T+e}, {c1}")
    for e in range(8): a(f"v_mul_f32 v{T+e}, v{T+e}, v{gr[e]}")
    for e in range(8):
        a(f"v_exp_f32 v{T+e}, v{T+e}")
        a(f"v_mul_f32 v{ur[e]}, v{gr[e]}, v{ur[e]}")
    for e in range(8): a(f"v_add_f32 v{T+e}, 1.0, v{T+e}")
    for e in range(8): a(f"v_rcp_f32 v{T+e}, v{T+e}")
    for e in range(8): a(f"v_mul_f32 v{T+e}, v{T+e}, v{ur[e]}")
    for e in range(4): a(f"v_cvt_pk_bf16_f32 v{20+e}, v{T+2*e}, v{T+2*e+1}")
    a("buffer_store_dwordx4 v[20:23], v9, s[28:31], s37 offen")
    a("s_add_u32 s37, s37, 512")
    a("s_setpc_b64 s[40:41]")
    a.label('K4_done')
    a("s_endpgm")
    return a.finish() + kd('gemm1_kernel', 256, 48, 256)

K5_NWG = 234
RP = 272
K5_LDS = max(4 * 3 * 8192, 4 * 80 * RP)
def k5():
    a = Asm()
    a.raw(khead('gemm2_kernel'))
    ACC, HS, WF = 176, 56, 24
    a(f"""
    s_cmp_ge_u32 s2, {K5_NWG}
    s_cbranch_scc1 K5_done
    s_load_dwordx4 s[4:7], s[0:1], {KA['wd']}
    s_load_dwordx2 s[10:11], s[0:1], {KA['ws']}
    v_lshrrev_b32 v1, 6, v0
    v_and_b32 v2, 63, v0
    v_readfirstlane_b32 s3, v1
    s_and_b32 s12, s2, 7
    s_lshr_b32 s13, s2, 3
    s_mul_i32 s14, s12, 29
    s_min_u32 s15, s12, 2
    s_add_u32 s14, s14, s15
    s_add_u32 s14, s14, s13
    s_mul_i32 s15, s14, 7282
    s_lshr_b32 s15, s15, 16
    s_mul_i32 s16, s15, 9
    s_sub_u32 s16, s14, s16
    s_waitcnt lgkmcnt(0)
    """)
    srd(a, 20, 4, G.SZ_W)
    srd(a, 24, 10, G.SZ_HH, G.WS_HH)
    srd(a, 28, 10, G.SZ_H, G.WS_H)
    srd(a, 32, 6, G.SZ_X)
    a(f"""
    v_lshlrev_b32 v3, 4, v2
    v_add_u32 v4, 147456, v3
    v_add_u32 v5, {2*147456}, v3
    v_add_u32 v6, {3*147456}, v3
    v_add_u32 v7, {4*147456}, v3
    s_mul_i32 s36, s15, {5*147456}
    s_lshl_b32 s17, s3, 11
    s_add_u32 s36, s36, s17
    s_mul_i32 s37, s3, {64*1152}
    s_lshl_b32 s17, s16, 7
    s_add_u32 s37, s37, s17
    s_mul_i32 s38, s3, {3*8192}
    """)
    a(f"""
    v_lshrrev_b32 v16, 3, v2
    s_movk_i32 s17, 1152
    v_mul_u32_u24 v16, s17, v16
    v_bfe_u32 v17, v2, 1, 2
    v_bfe_u32 v18, v2, 4, 1
    v_xor_b32 v17, v17, v18
    v_lshl_add_u32 v16, v17, 5, v16
    v_and_b32 v17, 1, v2
    v_lshl_add_u32 v16, v17, 4, v16
    v_xor_b32 v17, 64, v16
    """)
    for i in range(8):
        src = 'v16' if i % 2 == 0 else 'v17'
        a(f"v_add_u32 v{8+i}, {i*9216 - (i&3)*1024}, {src}")
    a(f"""
    v_lshrrev_b32 v20, 4, v2
    v_bfe_u32 v21, v2, 2, 2
    v_lshl_add_u32 v20, v20, 3, v21
    v_lshlrev_b32 v20, 7, v20
    v_and_b32 v21, 3, v2
    v_lshl_add_u32 v20, v21, 3, v20
    v_add_u32 v20, s38, v20
    v_bfe_u32 v21, v2, 3, 2
    v_lshlrev_b32 v21, 5, v21
    """)
    for dt in range(4):
        a(f"v_xor_b32 v22, {32*dt}, v21")
        a(f"v_add_u32 v{16+dt}, v20, v22")
    def hreg(j, tt, ks):
        r = HS + 40 * j + 8 * tt + 4 * ks
        return f"v[{r}:{r+3}]"
    def loads(j):
        L = []
        L.append([f"s_add_u32 m0, s38, {j*8192}",
                  "buffer_load_dwordx4 v8, s[20:23], s37 offen lds"])
        for i in range(1, 4):
            L.append([f"buffer_load_dwordx4 v{8+i}, s[20:23], s37 offen offset:{1024*i} lds"])
        L.append([f"s_add_u32 m0, s38, {j*8192+4096}",
                  "buffer_load_dwordx4 v12, s[20:23], s37 offen lds"])
        for i in range(5, 8):
            L.append([f"buffer_load_dwordx4 v{8+i}, s[20:23], s37 offen offset:{1024*(i-4)} lds"])
        for ks in range(2):
            for tt in range(5):
                L.append([f"buffer_load_dwordx4 {hreg(j,tt,ks)}, v{3+tt}, s[24:27], s36 offen offset:{1024*ks}"])
        L[-1] += [f"s_add_u32 s36, s36, 8192", f"s_add_u32 s37, s37, {256*1152}"]
        return L
    for j in range(3):
        for grp in loads(j):
            for l in grp: a(l)
    for i in range(80):
        a(f"v_mov_b32 v{ACC+i}, 0")
    a("s_mov_b32 s39, 0")
    a.label('K5_loop')
    a("s_cmp_eq_u32 s39, 5")
    a("s_cselect_b32 s36, 0x7f000000, s36")
    a("s_cselect_b32 s37, 0x7f000000, s37")
    for j in range(3):
        a("s_waitcnt vmcnt(36)")
        for ks in range(2):
            for dt in range(4):
                r = WF + 16 * ks + 4 * dt
                a(f"ds_read_b64_tr_b16 v[{r}:{r+1}], v{16+dt} offset:{j*8192+ks*4096}")
                a(f"ds_read_b64_tr_b16 v[{r+2}:{r+3}], v{16+dt} offset:{j*8192+ks*4096+512}")
        ld = loads(j)
        for ks in range(2):
            for dt in range(4):
                a(f"s_waitcnt lgkmcnt({14 - 8*ks - 2*dt})")
                r = WF + 16 * ks + 4 * dt
                for tt in range(5):
                    c = ACC + 4 * (dt * 5 + tt)
                    a(f"v_mfma_f32_16x16x32_bf16 v[{c}:{c+3}], v[{r}:{r+3}], {hreg(j,tt,ks)}, v[{c}:{c+3}]")
        for grp in ld:
            for l in grp: a(l)
    a("s_add_u32 s39, s39, 1")
    a("s_cmp_lt_u32 s39, 6")
    a("s_cbranch_scc1 K5_loop")
    a("s_waitcnt vmcnt(0)")
    a("s_barrier")
    a(f"""
    v_and_b32 v3, 15, v2
    s_movk_i32 s17, {RP}
    v_mul_u32_u24 v3, s17, v3
    v_lshrrev_b32 v4, 4, v2
    v_lshl_add_u32 v3, v4, 4, v3
    s_mul_i32 s38, s3, {80*RP}
    v_add_u32 v3, s38, v3
    """)
    for dt in range(4):
        for tt in range(5):
            c = ACC + 4 * (dt * 5 + tt)
            a(f"ds_write_b128 v3, v[{c}:{c+3}] offset:{16*tt*RP + 64*dt}")
    a(f"""
    v_lshrrev_b32 v4, 3, v0
    v_and_b32 v5, 7, v0
    v_mul_u32_u24 v6, s17, v4
    v_lshl_add_u32 v6, v5, 5, v6
    v_add_u32 v11, {2*80*RP}, v6
    s_mul_i32 s18, s15, 80
    v_add_u32 v7, s18, v4
    s_movk_i32 s19, 1152
    v_mul_u32_u24 v7, s19, v7
    v_lshl_add_u32 v7, v5, 4, v7
    s_lshl_b32 s18, s16, 7
    v_add_u32 v7, s18, v7
    v_add_u32 v8, {32*1152}, v7
    v_add_u32 v9, {64*1152}, v7
    v_mov_b32 v10, 0x7f000000
    v_cmp_gt_u32 vcc, 128, v0
    v_cndmask_b32 v9, v10, v9, vcc
    buffer_load_dwordx4 v[12:15], v7, s[28:31], 0 offen
    buffer_load_dwordx4 v[16:19], v8, s[28:31], 0 offen
    buffer_load_dwordx4 v[20:23], v9, s[28:31], 0 offen
    s_mov_b32 s18, 0xffff0000
    s_waitcnt lgkmcnt(0)
    s_barrier
    """)
    for rnd in range(3):
        if rnd == 2:
            a("s_cmp_ge_u32 s3, 2")
            a("s_cbranch_scc1 K5_done")
        for w in range(4):
            r = 32 + 8 * w
            bs, wo = ('v6', w) if w < 2 else ('v11', w - 2)
            a(f"ds_read_b128 v[{r}:{r+3}], {bs} offset:{wo*80*RP + rnd*32*RP}")
            a(f"ds_read_b128 v[{r+4}:{r+7}], {bs} offset:{wo*80*RP + rnd*32*RP + 16}")
        a("s_waitcnt lgkmcnt(4)")
        for p in range(4): a(f"v_pk_add_f32 v[{32+2*p}:{33+2*p}], v[{32+2*p}:{33+2*p}], v[{40+2*p}:{41+2*p}]")
        a("s_waitcnt lgkmcnt(0)")
        for p in range(4): a(f"v_pk_add_f32 v[{48+2*p}:{49+2*p}], v[{48+2*p}:{49+2*p}], v[{56+2*p}:{57+2*p}]")
        for p in range(4): a(f"v_pk_add_f32 v[{32+2*p}:{33+2*p}], v[{32+2*p}:{33+2*p}], v[{48+2*p}:{49+2*p}]")
        for p in range(4): a(f"v_cvt_pk_bf16_f32 v{40+p}, v{32+2*p}, v{33+2*p}")
        a(f"s_waitcnt vmcnt({2})")
        hr = 12 + 4 * rnd
        for p in range(4):
            a(f"v_lshlrev_b32 v{32+2*p}, 16, v{40+p}")
            a(f"v_and_b32 v{33+2*p}, s18, v{40+p}")
            a(f"v_lshlrev_b32 v{48+2*p}, 16, v{hr+p}")
            a(f"v_and_b32 v{49+2*p}, s18, v{hr+p}")
        for p in range(4): a(f"v_pk_add_f32 v[{32+2*p}:{33+2*p}], v[{32+2*p}:{33+2*p}], v[{48+2*p}:{49+2*p}]")
        o = 64 + 4 * rnd
        for p in range(4): a(f"v_cvt_pk_bf16_f32 v{o+p}, v{32+2*p}, v{33+2*p}")
        a(f"buffer_store_dwordx4 v[{o}:{o+3}], v{7+rnd}, s[32:35], 0 offen")
    a.label('K5_done')
    a("s_endpgm")
    return a.finish() + kd('gemm2_kernel', 256, 48, 256)

def launches():
    return {
        'k4': f"; @launch kernel=gemm1_kernel grid=(256,1,1) block=(512,1,1) lds={K4_LDS}",
        'k5': f"; @launch kernel=gemm2_kernel grid=({K5_NWG},1,1) block=(256,1,1) lds={K5_LDS}",
    }
def fns():
    return dict(k4=k4, k5=k5)
```

```python
import sys, struct
from asmlib import Asm, kd, khead

S, D, F = 2048, 576, 4608
KA = dict(q=0, k=8, v=16, shk=24, ssmk=32, ssmd=40, bx=48, wg=56, wu=64, wd=72, out=80, dbg=88, ws=96)
KVR_PITCH = 4736
WS_KVR = 0;            SZ_KVR = D * KVR_PITCH
WS_ZB = 0x400000;      SZ_ZB = S * D * 2
WS_H = 0x800000;       SZ_H = S * D * 2
WS_HN = 0xC00000;      SZ_HN = S * D * 2
WS_HH = 0x1000000;     SZ_HH = S * F * 2
SZ_X = S * D * 2
SZ_W = D * F * 2

def f32(x):
    return '0x%08x' % struct.unpack('<I', struct.pack('<f', x))[0]

def srd(a, d, b, size, off=0):
    if off:
        a(f"s_add_u32 s{d}, s{b}, {off}")
        a(f"s_addc_u32 s{d+1}, s{b+1}, 0")
    else:
        a(f"s_mov_b32 s{d}, s{b}")
        a(f"s_mov_b32 s{d+1}, s{b+1}")
    a(f"s_mov_b32 s{d+2}, {size}")
    a(f"s_mov_b32 s{d+3}, 0x00020000")

def k1():
    a = Asm()
    a.raw(khead('prep_kernel'))
    a(f"""
    s_cmp_ge_u32 s2, 576
    s_cbranch_scc1 K1_done
    s_load_dwordx4 s[4:7], s[0:1], {KA['k']}
    s_load_dwordx2 s[8:9], s[0:1], {KA['shk']}
    s_load_dwordx2 s[10:11], s[0:1], {KA['ws']}
    s_and_b32 s3, s2, 7
    s_mul_i32 s3, s3, 72
    s_lshr_b32 s12, s2, 3
    s_add_u32 s3, s3, s12
    s_lshr_b32 s12, s3, 6
    s_and_b32 s13, s3, 63
    v_and_b32 v1, 15, v0
    v_lshrrev_b32 v2, 4, v0
    s_lshl_b32 s14, s12, 6
    v_lshl_add_u32 v3, v1, 2, s14
    s_lshl_b32 s15, s13, 5
    v_lshl_add_u32 v4, v2, 3, s15
    s_movk_i32 s16, 1152
    v_mul_u32_u24 v5, s16, v4
    v_lshl_add_u32 v5, v3, 1, v5
    v_add_u32 v6, 4608, v5
    v_subrev_u32 v7, 3456, v5
    v_cmp_eq_u32 vcc, 0, v4
    v_mov_b32 v8, 0x80000000
    v_cndmask_b32 v7, v7, v8, vcc
    v_lshlrev_b32 v9, 3, v3
    s_waitcnt lgkmcnt(0)
    """)
    srd(a, 20, 4, SZ_X)
    srd(a, 24, 6, SZ_X)
    srd(a, 28, 8, D * 8)
    srd(a, 32, 10, SZ_KVR, WS_KVR)
    KR = 16
    VR = 40
    WR = 56
    a(f"buffer_load_dwordx4 v[{WR}:{WR+3}], v9, s[28:31], 0 offen")
    a(f"buffer_load_dwordx4 v[{WR+4}:{WR+7}], v9, s[28:31], 0 offen offset:16")
    for r in range(11):
        vo, off = ('v7', r * 1152) if r < 3 else (('v5', (r - 3) * 1152) if r < 7 else ('v6', (r - 7) * 1152))
        a(f"buffer_load_dwordx2 v[{KR+2*r}:{KR+2*r+1}], {vo}, s[20:23], 0 offen offset:{off}")
    for r in range(8):
        vo, off = ('v5', r * 1152) if r < 4 else ('v6', (r - 4) * 1152)
        a(f"buffer_load_dwordx2 v[{VR+2*r}:{VR+2*r+1}], {vo}, s[24:27], 0 offen offset:{off}")
    a(f"""
    s_add_u32 s17, s14, s13
    s_mul_i32 s17, s17, {KVR_PITCH}
    v_lshlrev_b32 v10, 4, v0
    v_add_u32 v10, 4224, v10
    v_cmp_eq_u32 vcc, 32, v0
    v_mov_b32 v11, 112
    v_cndmask_b32 v10, v10, v11, vcc
    v_cmp_lt_u32 vcc, 32, v0
    v_cndmask_b32 v10, v10, v8, vcc
    v_mov_b32 v12, 0
    v_mov_b32 v13, 0
    v_mov_b32 v14, 0
    v_mov_b32 v15, 0
    buffer_store_dwordx4 v[12:15], v10, s[32:35], s17 offen
    """)
    a(f"""
    s_movk_i32 s16, {KVR_PITCH}
    v_mul_u32_u24 v10, s16, v3
    v_lshlrev_b32 v11, 1, v4
    v_sub_u32 v10, v10, v11
    v_add_u32 v10, 4208, v10
    v_add_u32 v11, {2*KVR_PITCH}, v10
    s_mov_b32 s18, 0xffff0000
    """)
    WF = 64
    a("s_waitcnt vmcnt(20)")
    for e in range(4):
        for t in range(4):
            src = WR + 2 * e + (t >> 1)
            dst = WF + ((e >> 1) * 4 + t) * 2 + (e & 1)
            if t & 1: a(f"v_and_b32 v{dst}, s18, v{src}")
            else: a(f"v_lshlrev_b32 v{dst}, 16, v{src}")
    KF = 80
    a("s_waitcnt vmcnt(9)")
    for r in range(11):
        for p in range(2):
            src = KR + 2 * r + p
            a(f"v_lshlrev_b32 v{KF+4*r+2*p}, 16, v{src}")
            a(f"v_and_b32 v{KF+4*r+2*p+1}, s18, v{src}")
    AC = 16
    AC = 124
    for r in range(8):
        for p in range(2):
            d = AC + 4 * r + 2 * p
            kf = lambda rr: f"v[{KF+4*rr+2*p}:{KF+4*rr+2*p+1}]"
            wf = lambda t: f"v[{WF+(p*4+t)*2}:{WF+(p*4+t)*2+1}]"
            a(f"v_pk_mul_f32 v[{d}:{d+1}], {kf(r)}, {wf(3)}")
            a(f"v_pk_fma_f32 v[{d}:{d+1}], {kf(r+1)}, {wf(2)}, v[{d}:{d+1}]")
            a(f"v_pk_fma_f32 v[{d}:{d+1}], {kf(r+2)}, {wf(1)}, v[{d}:{d+1}]")
            a(f"v_pk_fma_f32 v[{d}:{d+1}], {kf(r+3)}, {wf(0)}, v[{d}:{d+1}]")
    a("s_waitcnt vmcnt(1)")
    VF = 16
    for r in range(8):
        for p in range(2):
            src = VR + 2 * r + p
            t = VF + 2 * ((2 * r + p) % 8)
            d = AC + 4 * r + 2 * p
            a(f"v_lshlrev_b32 v{t}, 16, v{src}")
            a(f"v_and_b32 v{t+1}, s18, v{src}")
            a(f"v_pk_mul_f32 v[{d}:{d+1}], v[{d}:{d+1}], v[{t}:{t+1}]")
    OUT = 80
    for e in range(4):
        for j in range(4):
            a(f"v_cvt_pk_bf16_f32 v{OUT+4*e+j}, v{AC+4*(7-2*j)+e}, v{AC+4*(6-2*j)+e}")
        vo = 'v10' if e < 2 else 'v11'
        if e & 1:
            a(f"v_add_u32 {vo}, {KVR_PITCH}, {vo}")
        a(f"buffer_store_dwordx4 v[{OUT+4*e}:{OUT+4*e+3}], {vo}, s[32:35], 0 offen")
    a.label('K1_done')
    a("s_endpgm")
    return a.finish() + kd('prep_kernel', 160, 40, 160)

A_STRIDE = 4416
BB = 17664
B_STRIDE = 4640
K2_LDS = BB + B_STRIDE + 4608
def k2():
    a = Asm()
    a.raw(khead('conv_kernel'))
    a(f"""
    s_cmp_ge_u32 s2, 576
    s_cbranch_scc1 K2_done
    s_load_dwordx4 s[4:7], s[0:1], {KA['ssmk']}
    s_load_dwordx2 s[10:11], s[0:1], {KA['ws']}
    s_and_b32 s3, s2, 7
    s_mul_i32 s3, s3, 72
    s_lshr_b32 s12, s2, 3
    s_add_u32 s3, s3, s12
    v_lshlrev_b32 v1, 4, v0
    v_mov_b32 v2, 0
    s_lshl_b32 s13, s3, 12
    s_mul_i32 s14, s3, {KVR_PITCH}
    s_lshl_b32 s15, s3, 1
    s_waitcnt lgkmcnt(0)
    """)
    srd(a, 20, 4, SZ_X)
    srd(a, 24, 6, D * 2)
    srd(a, 28, 10, SZ_KVR, WS_KVR)
    srd(a, 32, 10, SZ_ZB, WS_ZB)
    for b in range(2):
        a(f"s_add_u32 s16, s14, {128 - 8*b}")
        a(f"s_mov_b32 m0, {BB + b*B_STRIDE}")
        for i in range(4):
            a(f"buffer_load_dwordx4 v1, s[28:31], s16 offen offset:{i*1024} lds")
        a(f"s_add_u32 s16, s16, 4096")
        a(f"s_mov_b32 m0, {BB + b*B_STRIDE + 4096}")
        a("s_mov_b64 exec, 0xffffffff")
        a(f"buffer_load_dwordx4 v1, s[28:31], s16 offen lds")
        a("s_mov_b64 exec, -1")
    a("buffer_load_dwordx2 v[4:5], v2, s[20:23], s13 offen")
    a("buffer_load_ushort v6, v2, s[24:27], s15 offen")
    for r in range(4):
        a(f"s_add_u32 s16, s13, {2*(r+1)}")
        a(f"s_mov_b32 m0, {r*A_STRIDE + 64}")
        for i in range(4):
            a(f"buffer_load_dwordx4 v1, s[20:23], s16 offen offset:{i*1024} lds")
    a(f"""
    v_lshrrev_b32 v7, 3, v0
    s_movk_i32 s16, {A_STRIDE}
    v_mul_u32_u24 v7, s16, v7
    v_and_b32 v8, 7, v0
    v_lshlrev_b32 v9, 4, v8
    v_add_u32 v10, {4160-64}, v9
    v_cmp_gt_u32 vcc, 4, v8
    v_cndmask_b32 v9, v10, v9, vcc
    v_add_u32 v7, v7, v9
    v_mov_b32 v12, 0
    v_mov_b32 v13, 0
    v_mov_b32 v14, 0
    v_mov_b32 v15, 0
    s_mov_b64 exec, 0xffffffff
    ds_write_b128 v7, v[12:15]
    s_mov_b64 exec, -1
    """)
    a(f"""
    v_and_b32 v7, 3, v0
    v_mul_u32_u24 v7, s16, v7
    v_bfe_u32 v8, v0, 2, 2
    v_lshrrev_b32 v9, 4, v0
    v_add_u32 v8, v8, v9
    v_lshl_add_u32 v7, v8, 4, v7
    """)
    a(f"""
    v_and_b32 v10, 1, v0
    v_bfe_u32 v11, v0, 1, 3
    s_movk_i32 s17, {B_STRIDE}
    v_mul_u32_u24 v8, s17, v10
    v_lshl_add_u32 v8, v9, 4, v8
    v_lshlrev_b32 v16, 6, v11
    v_sub_u32 v8, v8, v16
    v_add_u32 v8, {BB+448}, v8
    """)
    a(f"""
    v_lshlrev_b32 v17, 4, v9
    v_add_u32 v17, v17, v16
    v_lshl_add_u32 v17, v10, 3, v17
    v_sub_u32 v17, {BB+504}, v17
    """)
    a(f"""
    v_lshl_add_u32 v18, v11, 2, v9
    s_movk_i32 s17, 9216
    v_mul_u32_u24 v18, s17, v18
    v_lshl_add_u32 v18, v10, 3, v18
    s_lshl_b32 s18, s3, 4
    """)
    a(f"""
    v_sub_u32 v19, 3, v0
    v_lshlrev_b32 v19, 4, v19
    v_mul_u32_u24 v20, s16, v0
    s_waitcnt vmcnt(17)
    v_lshlrev_b64 v[4:5], v19, v[4:5]
    s_mov_b64 exec, 0xf
    ds_write_b64 v20, v[4:5] offset:56
    s_mov_b64 exec, -1
    """)
    ACC = 32
    AF = 64
    NAF = 6
    BX = 88
    for i in range(32):
        a(f"v_mov_b32 v{ACC+i}, 0")
    def breg(q):
        qp = 56 - q
        return f"a[{4*qp}:{4*qp+3}]" if qp < 64 else f"v[{BX}:{BX+3}]"
    def bread(q):
        a(f"ds_read_b128 {breg(q)}, v8 offset:{64*(56-q)}")
    def areg(m):
        r = AF + 4 * (m % NAF)
        return f"v[{r}:{r+3}]"
    def aread(m):
        a(f"ds_read_b128 {areg(m)}, v7 offset:{64*m}")
    pend = []
    def issue(tag, fn):
        fn(); pend.append(tag)
    def wait_for(tags):
        idx = max([i for i, t in enumerate(pend) if t in tags], default=-1)
        if idx < 0: return
        n = len(pend) - 1 - idx
        a(f"s_waitcnt lgkmcnt({min(n,15)})")
        del pend[:idx + 1]
    pend += ['w0', 'w1']
    def bq_for(m):
        return [8 * T - m for T in range(8) if 8 * T - m >= -8]
    loaded = set()
    for q in bq_for(0):
        issue(('B', q), lambda q=q: bread(q)); loaded.add(q)
    a("s_waitcnt vmcnt(0)")
    for m in range(3):
        issue(('A', m), lambda m=m: aread(m))
    for m in range(65):
        pf = []
        if m + 1 <= 8:
            pf += [('B', q) for q in bq_for(m + 1) if q not in loaded]
        if m + 3 <= 64:
            pf.append(('A', m + 3))
        Ts = [T for T in range(8) if 8 * T - m >= -8]
        first = True
        for T in Ts:
            q = 8 * T - m
            wait_for({('A', m), ('B', q)})
            a(f"v_mfma_f32_16x16x32_bf16 v[{ACC+4*T}:{ACC+4*T+3}], {areg(m)}, {breg(q)}, v[{ACC+4*T}:{ACC+4*T+3}]")
            k = -(-len(pf) // max(1, (len(Ts) - Ts.index(T))))
            for _ in range(k):
                if len(pend) >= 14:
                    wait_for({pend[len(pend) - 13]})
                tag = pf.pop(0)
                if tag[0] == 'B':
                    issue(tag, lambda q=tag[1]: bread(q)); loaded.add(tag[1])
                else:
                    issue(tag, lambda mm=tag[1]: aread(mm))
    KV = 64
    for T in range(8):
        a(f"ds_read_b64 v[{KV+2*T}:{KV+2*T+1}], v17 offset:{512*(7-T)}")
    a("v_lshlrev_b32 v6, 16, v6")
    a("s_mov_b32 s19, 0xffff0000")
    for T in range(8):
        a(f"s_waitcnt lgkmcnt({7-T})")
        k0, k1_ = KV + 2 * T, KV + 2 * T + 1
        t = 80 + 4 * (T & 1)
        a(f"v_and_b32 v{t}, s19, v{k1_}")
        a(f"v_lshlrev_b32 v{t+1}, 16, v{k1_}")
        a(f"v_and_b32 v{t+2}, s19, v{k0}")
        a(f"v_lshlrev_b32 v{t+3}, 16, v{k0}")
        for r in range(4):
            a(f"v_fmac_f32 v{ACC+4*T+r}, v6, v{t+r}")
        o = 20 + 2 * (T % 4)
        a(f"v_cvt_pk_bf16_f32 v{o}, v{ACC+4*T}, v{ACC+4*T+1}")
        a(f"v_cvt_pk_bf16_f32 v{o+1}, v{ACC+4*T+2}, v{ACC+4*T+3}")
        a(f"buffer_store_dwordx2 v[{o}:{o+1}], v18, s[32:35], s18 offen")
        if T < 7:
            a(f"s_add_u32 s18, s18, 294912")
    a.label('K2_done')
    a("s_endpgm")
    return a.finish() + kd('conv_kernel', 352, 40, 96)

K3_LDS = 9216 + 2 * 640
def k3():
    a = Asm()
    a.raw(khead('ln_kernel'))
    a(f"""
    s_cmp_ge_u32 s2, 256
    s_cbranch_scc1 K3_done
    s_load_dwordx2 s[4:5], s[0:1], {KA['q']}
    s_load_dwordx2 s[10:11], s[0:1], {KA['ws']}
    v_lshrrev_b32 v1, 6, v0
    v_and_b32 v2, 63, v0
    v_readfirstlane_b32 s3, v1
    v_and_b32 v3, 7, v0
    v_lshrrev_b32 v4, 3, v0
    s_lshl_b32 s12, s2, 3
    v_add_u32 v5, s12, v3
    s_movk_i32 s13, 1152
    v_mul_u32_u24 v5, s13, v5
    v_lshl_add_u32 v5, v4, 4, v5
    v_lshlrev_b32 v6, 4, v0
    s_mul_i32 s14, s2, 9216
    s_lshl_b32 s15, s3, 10
    s_waitcnt lgkmcnt(0)
    """)
    srd(a, 20, 4, SZ_X)
    srd(a, 24, 10, SZ_ZB, WS_ZB)
    srd(a, 28, 10, SZ_H, WS_H)
    srd(a, 32, 10, SZ_HN, WS_HN)
    a(f"""
    buffer_load_dwordx4 v[8:11], v5, s[20:23], 0 offen
    s_mov_b32 m0, s15
    buffer_load_dwordx4 v6, s[24:27], s14 offen lds
    """)
    a(f"""
    v_lshrrev_b32 v7, 4, v2
    v_lshlrev_b32 v7, 8, v7
    v_bfe_u32 v12, v2, 1, 1
    v_lshl_add_u32 v7, v12, 7, v7
    v_bfe_u32 v12, v2, 2, 2
    v_lshl_add_u32 v7, v12, 4, v7
    v_and_b32 v12, 1, v2
    v_lshl_add_u32 v7, v12, 3, v7
    v_add_u32 v7, s15, v7
    """)
    a(f"""
    s_lshr_b32 s16, s2, 2
    s_mul_i32 s16, s16, {36*1024}
    s_and_b32 s17, s2, 3
    s_lshl_b32 s17, s17, 7
    s_add_u32 s16, s16, s17
    v_lshrrev_b32 v12, 1, v4
    v_lshlrev_b32 v12, 10, v12
    v_and_b32 v13, 1, v4
    v_lshl_add_u32 v12, v13, 9, v12
    v_lshl_add_u32 v12, v3, 4, v12
    """)
    a(f"""
    v_mul_u32_u24 v13, 80, v3
    v_add_u32 v13, 9216, v13
    s_lshl_b32 s17, s3, 3
    v_add_u32 v14, s17, v13
    s_mov_b32 s18, 0xffff0000
    s_mov_b32 s19, {f32(1.0/576)}
    s_mov_b32 s36, {f32(1e-5)}
    s_waitcnt vmcnt(1)
    """)
    X = 16
    for j in range(4):
        a(f"v_lshlrev_b32 v{X+2*j}, 16, v{8+j}")
        a(f"v_and_b32 v{X+2*j+1}, s18, v{8+j}")
    def stats(src, ldsoff, tag):
        a(f"v_add_f32 v32, v{src}, v{src+1}")
        a(f"v_mul_f32 v33, v{src}, v{src}")
        a(f"v_fmac_f32 v33, v{src+1}, v{src+1}")
        for j in range(2, 8):
            a(f"v_add_f32 v32, v32, v{src+j}")
            a(f"v_fmac_f32 v33, v{src+j}, v{src+j}")
        a("v_add_f32_dpp v32, v32, v32 row_ror:8 row_mask:0xf bank_mask:0xf")
        a("v_add_f32_dpp v33, v33, v33 row_ror:8 row_mask:0xf bank_mask:0xf")
        a("v_mov_b32 v34, v32")
        a("v_mov_b32 v35, v33")
        a("v_permlane16_swap_b32 v32, v34")
        a("v_permlane16_swap_b32 v33, v35")
        a("v_add_f32 v32, v32, v34")
        a("v_add_f32 v33, v33, v35")
        a("v_mov_b32 v34, v32")
        a("v_mov_b32 v35, v33")
        a("v_permlane32_swap_b32 v32, v34")
        a("v_permlane32_swap_b32 v33, v35")
        a("v_add_f32 v32, v32, v34")
        a("v_add_f32 v33, v33, v35")
        a("s_mov_b64 exec, 0xff")
        a(f"ds_write_b64 v14, v[32:33] offset:{ldsoff}")
        a("s_mov_b64 exec, -1")
        a("s_waitcnt lgkmcnt(0)")
        a("s_barrier")
        for j in range(4):
            a(f"ds_read_b128 v[{44+4*j}:{47+4*j}], v13 offset:{ldsoff+16*j}")
        a(f"ds_read_b64 v[60:61], v13 offset:{ldsoff+64}")
        a("s_waitcnt lgkmcnt(0)")
        a("v_pk_add_f32 v[44:45], v[44:45], v[46:47]")
        a("v_pk_add_f32 v[48:49], v[48:49], v[50:51]")
        a("v_pk_add_f32 v[52:53], v[52:53], v[54:55]")
        a("v_pk_add_f32 v[56:57], v[56:57], v[58:59]")
        a("v_pk_add_f32 v[44:45], v[44:45], v[48:49]")
        a("v_pk_add_f32 v[52:53], v[52:53], v[56:57]")
        a("v_pk_add_f32 v[44:45], v[44:45], v[60:61]")
        a("v_pk_add_f32 v[44:45], v[44:45], v[52:53]")
        a("v_mul_f32 v40, s19, v44")
        a("v_mul_f32 v41, s19, v45")
        a("v_fma_f32 v41, -v40, v40, v41")
        a("v_max_f32 v41, 0, v41")
        a("v_cvt_pk_bf16_f32 v42, v40, v41")
        a("v_lshlrev_b32 v40, 16, v42")
        a("v_and_b32 v41, s18, v42")
        a("v_add_f32 v41, s36, v41")
        a("v_cvt_pk_bf16_f32 v41, v41, v41")
        a("v_and_b32 v41, s18, v41")
        a("v_sqrt_f32 v41, v41")
        a("v_cvt_pk_bf16_f32 v41, v41, v41")
        a("v_and_b32 v41, s18, v41")
        a("v_rcp_f32 v41, v41")
    stats(X, 0, 'a')
    a("s_waitcnt vmcnt(0)")
    a("ds_read_b64_tr_b16 v[36:37], v7")
    a("ds_read_b64_tr_b16 v[38:39], v7 offset:64")
    Hh = 24
    for j in range(8):
        a(f"v_sub_f32 v{Hh+j}, v{X+j}, v40")
    for j in range(8):
        a(f"v_mul_f32 v{Hh+j}, v{Hh+j}, v41")
    a("s_waitcnt lgkmcnt(0)")
    for j in range(4):
        a(f"v_lshlrev_b32 v{44+2*j}, 16, v{36+j}")
        a(f"v_and_b32 v{45+2*j}, s18, v{36+j}")
    for j in range(8):
        a(f"v_fma_f32 v{Hh+j}, v{Hh+j}, v{44+j}, v{X+j}")
    for j in range(4):
        a(f"v_cvt_pk_bf16_f32 v{8+j}, v{Hh+2*j}, v{Hh+2*j+1}")
    a("buffer_store_dwordx4 v[8:11], v5, s[28:31], 0 offen")
    for j in range(4):
        a(f"v_lshlrev_b32 v{X+2*j}, 16, v{8+j}")
        a(f"v_and_b32 v{X+2*j+1}, s18, v{8+j}")
    stats(X, 640, 'b')
    for j in range(8):
        a(f"v_sub_f32 v{Hh+j}, v{X+j}, v40")
    for j in range(8):
        a(f"v_mul_f32 v{Hh+j}, v{Hh+j}, v41")
    for j in range(4):
        a(f"v_cvt_pk_bf16_f32 v{36+j}, v{Hh+2*j}, v{Hh+2*j+1}")
    a("buffer_store_dwordx4 v[36:39], v12, s[32:35], s16 offen")
    a.label('K3_done')
    a("s_endpgm")
    return a.finish() + kd('ln_kernel', 64, 40, 64)

HEADER = """; sequential_preLN -> ssm_conv_h3 -> glu_gated_geglu : multi-kernel pipeline (generated by dev/gen.py)
"""
def build(kernels):
    launches = {
        'k1': "; @launch kernel=prep_kernel grid=(576,1,1) block=(64,1,1) lds=0",
        'k2': f"; @launch kernel=conv_kernel grid=(576,1,1) block=(64,1,1) lds={K2_LDS}",
        'k3': f"; @launch kernel=ln_kernel grid=(256,1,1) block=(576,1,1) lds={K3_LDS}",
    }
    try:
        import gen_gemm
        launches.update(gen_gemm.launches())
        fns = dict(k1=k1, k2=k2, k3=k3, **gen_gemm.fns())
    except ImportError:
        fns = dict(k1=k1, k2=k2, k3=k3)
    s = HEADER
    for k in kernels: s += launches[k] + '\n'
    s += '.amdgcn_target "amdgcn-amd-amdhsa--gfx950"\n.text\n'
    for k in dict.fromkeys(kernels): s += fns[k]()
    return s

if __name__ == '__main__':
    ks = sys.argv[2:] if len(sys.argv) > 2 else ['k1', 'k2', 'k3', 'k4', 'k5']
    open(sys.argv[1], 'w').write(build(ks))
```

```python
from asmlib import Asm, kd, khead
import gen as G
from gen import KA, srd, f32, S, D, F
import math, os
PREFETCH = os.environ.get('PREFETCH', '1') == '1'
DBG = os.environ.get('DBG', '')
WDSH = int(os.environ.get('WDSH', '6'))

STG = 37120
UPOFF = 18560
K4_SCR = 4 * STG
K4_LDS = K4_SCR + 1024

class SB:
    def __init__(self, a, name, maxc):
        self.a = a; self.name = name; self.maxc = maxc; self.q = []
    def issue(self, tag, n=1):
        for _ in range(n): self.q.append(tag)
    def need(self, tags):
        idx = max([i for i, t in enumerate(self.q) if t in tags], default=-1)
        if idx < 0: return
        n = len(self.q) - 1 - idx
        if n <= self.maxc:
            self.a(f"s_waitcnt {self.name}({n})")
            del self.q[:idx + 1]
        else:
            self.a(f"s_waitcnt {self.name}({self.maxc})")
            del self.q[:len(self.q) - self.maxc]
    def clear(self):
        self.q = []

KM = int(os.environ.get('KM', '6'))
PRIO = os.environ.get('PRIO', '1')
TPF = int(os.environ.get('TPF', '16'))
def k4():
    a = Asm()
    a.raw(khead('gemm1_kernel'))
    NTOK = max(12, 36 - 4 * KM)
    ACC, TOK, AF = 112, 112 - 4 * NTOK, 24
    DS_ = ACC
    NAF = (TOK - AF) // 4; PF = int(os.environ.get('PF', '5'))
    a(f"""
    s_cmp_ge_u32 s2, 256
    s_cbranch_scc1 K4_done
    """)
    G.stamp_rt(a, 6)
    G.stamp(a, 0)
    a(f"""
    s_load_dwordx4 s[4:7], s[0:1], {KA['wg']}
    s_load_dwordx2 s[10:11], s[0:1], {KA['ws']}
    s_load_dwordx2 s[44:45], s[0:1], {KA['wd']}
    v_lshrrev_b32 v1, 6, v0
    v_and_b32 v0, 63, v0
    v_readfirstlane_b32 s3, v1
    s_and_b32 s12, s2, 7
    s_lshr_b32 s13, s2, 3
    s_lshl_b32 s12, s12, 2
    s_and_b32 s14, s13, 3
    s_add_u32 s12, s12, s14
    s_lshr_b32 s13, s13, 2
    s_lshl_b32 s13, s13, 3
    s_add_u32 s13, s13, s3
    s_and_b32 s14, s3, 3
    s_mul_i32 s15, s14, 5
    s_cmp_eq_u32 s14, 3
    s_cselect_b32 s15, 14, s15
    s_lshl_b32 s17, s15, 6
    s_movk_i32 s18, 9216
    """)
    for i in range(5):
        a(f"v_add_u32 v11, s17, v0")
        if i: a(f"v_add_u32 v11, {64*i}, v11")
        a(f"v_mul_u32_u24 v12, 3641, v11")
        a(f"v_lshrrev_b32 v12, 16, v12")
        a(f"v_mul_u32_u24 v13, 18, v12")
        a(f"v_sub_u32 v13, v11, v13")
        a(f"v_mul_u32_u24 v12, s18, v12")
        a(f"v_lshl_add_u32 v{1+i}, v13, 4, v12")
        if 0 < i < 4: a(f"v_subrev_u32 v{1+i}, {1024*i}, v{1+i}")
    a(f"""
    s_cmp_ge_u32 s14, 2
    s_cselect_b32 s19, 1, 0
    v_mov_b32 v11, 0x7f000000
    s_cselect_b64 vcc, -1, 0
    v_cndmask_b32 v5, v5, v11, vcc
    s_mul_i32 s32, s12, 288
    s_mul_i32 s33, s13, {36*1024}
    v_lshlrev_b32 v8, 4, v0
    s_waitcnt lgkmcnt(0)
    s_cmp_ge_u32 s3, 4
    s_cselect_b32 s4, s6, s4
    s_cselect_b32 s5, s7, s5
    s_cselect_b32 s16, {UPOFF}, 0
    s_lshl_b32 s17, s15, 10
    s_add_u32 s16, s16, s17
    s_add_u32 s35, s16, 4096
    """)
    srd(a, 20, 4, G.SZ_W)
    srd(a, 24, 10, G.SZ_HN, G.WS_HN)
    srd(a, 28, 10, G.SZ_HH, G.WS_HH)
    vm = SB(a, 'vmcnt', 63)
    lg = SB(a, 'lgkmcnt', 14)
    issued_d = {}
    issued_t = set()
    def dma(st, p):
        slot = (st % 4) * STG
        if 'nowdma' in DBG and st > 0:
            issued_d[st] = issued_d.get(st, 0) + 1; return
        if p == 0:
            a(f"s_add_u32 m0, s16, {slot}")
            a("buffer_load_dwordx4 v1, s[20:23], s32 offen lds")
        elif p < 4:
            a(f"buffer_load_dwordx4 v{1+p}, s[20:23], s32 offen offset:{1024*p} lds")
        else:
            a(f"s_add_u32 s34, s35, {slot}")
            a("s_cmp_eq_u32 s19, 1")
            a(f"s_cselect_b32 m0, {K4_SCR}, s34")
            a("buffer_load_dwordx4 v5, s[20:23], s32 offen lds")
            a(f"s_add_u32 s32, s32, {64*9216}")
        vm.issue(('D', st)); issued_d[st] = issued_d.get(st, 0) + 1
    def tokreg(kap):
        r = TOK + 4 * (kap % NTOK)
        return f"v[{r}:{r+3}]"
    def tokload(kap):
        if 'notok' in DBG and kap > 3:
            issued_t.add(kap); return
        a(f"buffer_load_dwordx4 {tokreg(kap)}, v8, s[24:27], s33 offen offset:{1024*(kap%4)}")
        if kap % 4 == 3: a("s_add_u32 s33, s33, 4096")
        vm.issue(('T', kap)); issued_t.add(kap)
    for p in range(5): dma(0, p)
    for kap in range(4): tokload(kap)
    a(f"""
    s_lshl_b32 s42, s2, 3
    s_add_u32 s42, s42, s3
    s_mul_i32 s42, s42, 2592
    s_mov_b32 s46, {G.SZ_W}
    s_mov_b32 s47, 0x00020000
    v_bfe_u32 v11, v0, 1, 1
    s_movk_i32 s17, {UPOFF}
    v_mul_u32_u24 v6, s17, v11
    v_lshrrev_b32 v11, 5, v0
    v_bfe_u32 v12, v0, 2, 2
    v_lshl_add_u32 v11, v11, 3, v12
    v_mul_u32_u24 v11, 288, v11
    v_add_u32 v6, v6, v11
    v_and_b32 v11, 1, v0
    v_lshl_add_u32 v6, v11, 4, v6
    v_bfe_u32 v11, v0, 4, 1
    v_lshl_add_u32 v6, v11, 3, v6
    v_add_u32 v7, {2*STG}, v6
    v_bfe_u32 v11, v0, 4, 1
    s_mov_b32 s17, 147456
    v_mul_lo_u32 v9, s17, v11
    v_lshrrev_b32 v11, 5, v0
    v_lshl_add_u32 v9, v11, 8, v9
    v_and_b32 v11, 15, v0
    v_lshl_add_u32 v9, v11, 4, v9
    s_mul_i32 s37, s13, 294912
    s_mul_i32 s17, s12, 4608
    s_add_u32 s37, s37, s17
    v_mov_b32 v10, {f32(-2*math.log2(math.e)*math.sqrt(2/math.pi)*0.044715)}
    """)
    if PRIO == '1':
        a("s_cmp_ge_u32 s3, 4")
        a("s_cbranch_scc1 K4_np")
        a("s_setprio 1")
        a.label('K4_np')
    seq = [(t, kap) for kap in range(4 * KM) for t in range(9)]
    k0 = 4 * KM
    ND = int(os.environ.get('ND', '1'))
    for t in range(ND): seq += [(t, kap) for kap in range(k0, 32)]
    for t in range(ND): seq += [(t, kap) for kap in range(32, 36)]
    for t in range(ND, 9): seq += [(t, kap) for kap in range(k0, 36)]
    nK = 36 * KM
    first_rd = {}; last_rd = {}
    for i, (t, kap) in enumerate(seq):
        first_rd.setdefault(kap // 4, i); last_rd[kap // 4] = i
    last_tok = {}
    for i, (t, kap) in enumerate(seq): last_tok[kap] = i
    events = {}
    pre = {}
    def after(i, f): events.setdefault(i, []).append(f)
    def before(i, f): pre.setdefault(i, []).append(f)
    visible = {0}
    def bar(stages):
        def f():
            for s in stages: assert issued_d.get(s, 0) == 5, (s, issued_d)
            vm.need({('D', s) for s in stages})
            a("s_barrier")
            visible.update(stages)
        return f
    before(27, bar([1]))
    before(36 + 1, bar([]))
    before(36 + 27, bar([2]))
    before(72 + 1, bar([3]))
    before(108 + 1, bar([4]))
    before(144 + 1, bar([5]))
    if KM == 5:
        before(nK + 1, bar([6, 7]))
    elif KM == 6:
        before(180 + 1, bar([6]))
        before(nK - 6, bar([7]))
    elif KM == 7:
        before(180 + 1, bar([6]))
        before(216 + 9, bar([7]))
    YB = int(os.environ.get('YB', '6'))
    before(first_rd[8] - YB, lambda: G.stamp_nw(a, 18))
    before(first_rd[8] - YB, bar([8]))
    before(first_rd[8] - YB, lambda: G.stamp_nw(a, 4))
    vq = []
    for st in range(1, 9):
        e = 0 if st <= 3 else 36 * (st - 3) + 1
        for p in range(5): vq.append((e, ('D', st, p)))
    tq = [(0 if kap < NTOK else last_tok[kap - NTOK], ('T', kap)) for kap in range(4, 36)]
    def deadline(x):
        return first_rd[x[1]] - 12 if x[0] == 'D' else min(i for i, (t, k) in enumerate(seq) if k == x[1])
    allq = sorted(vq + tq, key=lambda ex: (deadline(ex[1]), ex[1]))
    pos = 0
    placed = []
    dlist = [ex for ex in allq if ex[1][0] == 'D']; dlist.sort(key=lambda ex: ex[1])
    tlist = [ex for ex in allq if ex[1][0] == 'T']; tlist.sort(key=lambda ex: ex[1])
    i = 0
    SP0 = int(os.environ.get('SP0', '2')); SP1 = int(os.environ.get('SP1', '4'))
    while dlist or tlist:
        cand = []
        if dlist and dlist[0][0] <= i: cand.append((deadline(dlist[0][1]), 'D'))
        if tlist and tlist[0][0] <= i: cand.append((deadline(tlist[0][1]), 'T'))
        if cand:
            w = min(cand)[1]
            ex = (dlist if w == 'D' else tlist).pop(0)
            x = ex[1]
            if w == 'D': after(i, lambda x=x: dma(x[1], x[2]))
            else: after(i, lambda x=x: tokload(x[1]))
            i += SP0 if i < 72 or i >= nK else SP1
        else:
            i += 1
    if PREFETCH:
        def wd():
            a("v_lshlrev_b32 v11, 3, v8")
            a("s_mov_b64 exec, 0x1fffff")
            a("buffer_load_dword v11, v11, s[44:47], s42 offen")
            a("s_mov_b64 exec, -1")
            vm.issue('pf')
        after(first_rd[8] + 4, wd)
    def taddr(t, kap):
        st = kap // 4; slot = st % 4
        base = 'v6' if slot < 2 else 'v7'
        return base, (slot & 1) * STG + 16 * (kap % 4) * 288 + 32 * t
    free = [AF + 4 * i for i in range(NAF)]
    assign = {}
    nissued = 0
    def issue_upto(n, cap=99):
        nonlocal nissued
        cnt = 0
        while nissued < min(n, len(seq)) and free and (seq[nissued][1] // 4) in visible and cnt < cap:
            r = free.pop(0); assign[nissued] = r
            base, off = taddr(*seq[nissued])
            a(f"ds_read_b64_tr_b16 v[{r}:{r+1}], {base} offset:{off}")
            a(f"ds_read_b64_tr_b16 v[{r+2}:{r+3}], {base} offset:{off+4*288}")
            lg.issue(('F', nissued), 2)
            nissued += 1; cnt += 1
    G.stamp(a, 1)
    vm.need({('T', 3)})
    a("s_barrier")
    G.stamp(a, 2)
    issue_upto(PF)
    done_tiles = 0
    for i, (t, kap) in enumerate(seq):
        if i == nK: G.stamp_nw(a, 3)
        for f in pre.get(i, []): f()
        issue_upto(i + 1)
        assert i in assign, (i, t, kap)
        assert kap in issued_t
        vm.need({('T', kap)})
        lg.need({('F', i)})
        r = assign[i]
        last = (kap == 35)
        dst = f"v[{DS_}:{DS_+15}]" if last else f"v[{ACC+16*t}:{ACC+16*t+15}]"
        cin = "0" if kap == 0 else f"v[{ACC+16*t}:{ACC+16*t+15}]"
        a(f"v_mfma_f32_32x32x16_bf16 {dst}, v[{r}:{r+3}], {tokreg(kap)}, {cin}")
        pending_free = r
        issue_upto(i + 1 + (PF if i < nK else TPF), cap=(2 if not last else 6))
        free.append(pending_free)
        for f in events.get(i, []): f()
        if last:
            if t >= 1:
                pass
            if 'noepi' not in DBG: a("s_call_b64 s[40:41], K4_epi")
            vm.issue('st')
            G.stamp_nw(a, 9 + done_tiles); done_tiles += 1
            if 1 <= t <= 3:
                free += [ACC + 16 * t + 4 * q for q in range(4)]
    G.stamp(a, 5)
    if G.STAMPS: a("s_waitcnt vmcnt(0)")
    G.stamp(a, 8)
    G.stamp_rt(a, 7)
    G.stamp_store(a, 19, 3, 3, 10, 8)
    a("s_endpgm")
    a.label('K4_epi')
    a("s_nop 10")
    c1 = f32(-2 * math.log2(math.e) * math.sqrt(2 / math.pi))
    gr = [DS_ + 0, DS_ + 1, DS_ + 2, DS_ + 3, DS_ + 8, DS_ + 9, DS_ + 10, DS_ + 11]
    ur = [x + 4 for x in gr]
    T = 12
    if 'novalu' in DBG: a("s_branch K4_epi_st")
    for e in range(8): a(f"v_mul_f32 v{T+e}, v{gr[e]}, v{gr[e]}")
    for e in range(8): a(f"v_fmaak_f32 v{T+e}, v10, v{T+e}, {c1}")
    for e in range(8): a(f"v_mul_f32 v{T+e}, v{T+e}, v{gr[e]}")
    for e in range(8):
        a(f"v_exp_f32 v{T+e}, v{T+e}")
        a(f"v_mul_f32 v{ur[e]}, v{gr[e]}, v{ur[e]}")
    for e in range(8): a(f"v_add_f32 v{T+e}, 1.0, v{T+e}")
    for e in range(8): a(f"v_rcp_f32 v{T+e}, v{T+e}")
    for e in range(8): a(f"v_mul_f32 v{T+e}, v{T+e}, v{ur[e]}")
    for e in range(4): a(f"v_cvt_pk_bf16_f32 v{20+e}, v{T+2*e}, v{T+2*e+1}")
    a.label('K4_epi_st')
    if 'nostore' not in DBG: a(f"buffer_store_dwordx4 v[20:23], v9, s[28:31], s37 offen {'' if 'plainst' in DBG else ('nt' if 'ntst' in DBG else 'sc1')}")
    a("s_add_u32 s37, s37, 512")
    a("s_setpc_b64 s[40:41]")
    a.label('K4_done')
    a("s_endpgm")
    return a.finish() + kd('gemm1_kernel', 256, 48, 256)

K5_NWG = 234
RP = 272
K5_LDS = max(4 * 3 * 8192, 4 * 80 * RP)
def k5():
    a = Asm()
    a.raw(khead('gemm2_kernel'))
    ACC, HS, WF = 176, 56, 24
    a(f"""
    s_cmp_ge_u32 s2, {K5_NWG}
    s_cbranch_scc1 K5_done
    """)
    G.stamp_rt(a, 6)
    G.stamp(a, 0)
    a(f"""
    s_load_dwordx4 s[4:7], s[0:1], {KA['wd']}
    s_load_dwordx2 s[10:11], s[0:1], {KA['ws']}
    v_lshrrev_b32 v1, 6, v0
    v_and_b32 v2, 63, v0
    v_readfirstlane_b32 s3, v1
    s_and_b32 s12, s2, 7
    s_lshr_b32 s13, s2, 3
    s_mul_i32 s14, s12, 29
    s_min_u32 s15, s12, 2
    s_add_u32 s14, s14, s15
    s_add_u32 s14, s14, s13
    s_mul_i32 s15, s14, 7282
    s_lshr_b32 s15, s15, 16
    s_mul_i32 s16, s15, 9
    s_sub_u32 s16, s14, s16
    s_waitcnt lgkmcnt(0)
    """)
    srd(a, 20, 4, G.SZ_W)
    srd(a, 24, 10, G.SZ_HH, G.WS_HH)
    srd(a, 28, 10, G.SZ_H, G.WS_H)
    srd(a, 32, 6, G.SZ_X)
    a(f"""
    v_lshlrev_b32 v3, 4, v2
    v_add_u32 v4, 147456, v3
    v_add_u32 v5, {2*147456}, v3
    v_add_u32 v6, {3*147456}, v3
    v_add_u32 v7, {4*147456}, v3
    s_mul_i32 s36, s15, {5*147456}
    s_lshl_b32 s17, s3, 11
    s_add_u32 s36, s36, s17
    s_mul_i32 s37, s3, {64*1152}
    s_lshl_b32 s17, s16, 7
    s_add_u32 s37, s37, s17
    s_mul_i32 s38, s3, {3*8192}
    """)
    a(f"""
    v_lshrrev_b32 v16, 3, v2
    s_movk_i32 s17, 1152
    v_mul_u32_u24 v16, s17, v16
    v_bfe_u32 v17, v2, 1, 2
    v_bfe_u32 v18, v2, 4, 1
    v_xor_b32 v17, v17, v18
    v_lshl_add_u32 v16, v17, 5, v16
    v_and_b32 v17, 1, v2
    v_lshl_add_u32 v16, v17, 4, v16
    v_xor_b32 v17, 64, v16
    """)
    for i in range(8):
        src = 'v16' if i % 2 == 0 else 'v17'
        a(f"v_add_u32 v{8+i}, {i*9216 - (i&3)*1024}, {src}")
    a(f"""
    v_lshrrev_b32 v20, 4, v2
    v_bfe_u32 v21, v2, 2, 2
    v_lshl_add_u32 v20, v20, 3, v21
    v_lshlrev_b32 v20, 7, v20
    v_and_b32 v21, 3, v2
    v_lshl_add_u32 v20, v21, 3, v20
    v_add_u32 v20, s38, v20
    v_bfe_u32 v21, v2, 3, 2
    v_lshlrev_b32 v21, 5, v21
    """)
    for dt in range(4):
        a(f"v_xor_b32 v22, {32*dt}, v21")
        a(f"v_add_u32 v{16+dt}, v20, v22")
    def hreg(j, tt, ks):
        r = HS + 40 * j + 8 * tt + 4 * ks
        return f"v[{r}:{r+3}]"
    def loads(j):
        L = []
        L.append([f"s_add_u32 m0, s38, {j*8192}",
                  "buffer_load_dwordx4 v8, s[20:23], s37 offen lds"])
        for i in range(1, 4):
            L.append([f"buffer_load_dwordx4 v{8+i}, s[20:23], s37 offen offset:{1024*i} lds"])
        L.append([f"s_add_u32 m0, s38, {j*8192+4096}",
                  "buffer_load_dwordx4 v12, s[20:23], s37 offen lds"])
        for i in range(5, 8):
            L.append([f"buffer_load_dwordx4 v{8+i}, s[20:23], s37 offen offset:{1024*(i-4)} lds"])
        for ks in range(2):
            for tt in range(5):
                L.append([f"buffer_load_dwordx4 {hreg(j,tt,ks)}, v{3+tt}, s[24:27], s36 offen offset:{1024*ks}"])
        L[-1] += [f"s_add_u32 s36, s36, 8192", f"s_add_u32 s37, s37, {256*1152}"]
        return L
    for j in range(3):
        for grp in loads(j):
            for l in grp: a(l)
    for i in range(80):
        a(f"v_mov_b32 v{ACC+i}, 0")
    a("s_mov_b32 s39, 0")
    G.stamp(a, 1)
    a.label('K5_loop')
    a("s_cmp_eq_u32 s39, 5")
    a("s_cselect_b32 s36, 0x7f000000, s36")
    a("s_cselect_b32 s37, 0x7f000000, s37")
    for j in range(3):
        a("s_waitcnt vmcnt(36)")
        for ks in range(2):
            for dt in range(4):
                r = WF + 16 * ks + 4 * dt
                a(f"ds_read_b64_tr_b16 v[{r}:{r+1}], v{16+dt} offset:{j*8192+ks*4096}")
                a(f"ds_read_b64_tr_b16 v[{r+2}:{r+3}], v{16+dt} offset:{j*8192+ks*4096+512}")
        ld = loads(j)
        for ks in range(2):
            for dt in range(4):
                a(f"s_waitcnt lgkmcnt({14 - 8*ks - 2*dt})")
                r = WF + 16 * ks + 4 * dt
                for tt in range(5):
                    c = ACC + 4 * (dt * 5 + tt)
                    a(f"v_mfma_f32_16x16x32_bf16 v[{c}:{c+3}], v[{r}:{r+3}], {hreg(j,tt,ks)}, v[{c}:{c+3}]")
        for grp in ld:
            for l in grp: a(l)
    a("s_add_u32 s39, s39, 1")
    a("s_cmp_lt_u32 s39, 6")
    a("s_cbranch_scc1 K5_loop")
    G.stamp(a, 2)
    a("s_waitcnt vmcnt(0)")
    a("s_barrier")
    G.stamp(a, 3)
    a(f"""
    v_and_b32 v3, 15, v2
    s_movk_i32 s17, {RP}
    v_mul_u32_u24 v3, s17, v3
    v_lshrrev_b32 v4, 4, v2
    v_lshl_add_u32 v3, v4, 4, v3
    s_mul_i32 s38, s3, {80*RP}
    v_add_u32 v3, s38, v3
    """)
    for dt in range(4):
        for tt in range(5):
            c = ACC + 4 * (dt * 5 + tt)
            a(f"ds_write_b128 v3, v[{c}:{c+3}] offset:{16*tt*RP + 64*dt}")
    a(f"""
    v_lshrrev_b32 v4, 3, v0
    v_and_b32 v5, 7, v0
    v_mul_u32_u24 v6, s17, v4
    v_lshl_add_u32 v6, v5, 5, v6
    v_add_u32 v11, {2*80*RP}, v6
    s_mul_i32 s18, s15, 80
    v_add_u32 v7, s18, v4
    s_movk_i32 s19, 1152
    v_mul_u32_u24 v7, s19, v7
    v_lshl_add_u32 v7, v5, 4, v7
    s_lshl_b32 s18, s16, 7
    v_add_u32 v7, s18, v7
    v_add_u32 v8, {32*1152}, v7
    v_add_u32 v9, {64*1152}, v7
    v_mov_b32 v10, 0x7f000000
    v_cmp_gt_u32 vcc, 128, v0
    v_cndmask_b32 v9, v10, v9, vcc
    buffer_load_dwordx4 v[12:15], v7, s[28:31], 0 offen
    buffer_load_dwordx4 v[16:19], v8, s[28:31], 0 offen
    buffer_load_dwordx4 v[20:23], v9, s[28:31], 0 offen
    s_mov_b32 s18, 0xffff0000
    s_waitcnt lgkmcnt(0)
    s_barrier
    """)
    for rnd in range(3):
        if rnd == 2:
            a("s_cmp_ge_u32 s3, 2")
            a("s_cbranch_scc1 K5_fin")
        for w in range(4):
            r = 32 + 8 * w
            bs, wo = ('v6', w) if w < 2 else ('v11', w - 2)
            a(f"ds_read_b128 v[{r}:{r+3}], {bs} offset:{wo*80*RP + rnd*32*RP}")
            a(f"ds_read_b128 v[{r+4}:{r+7}], {bs} offset:{wo*80*RP + rnd*32*RP + 16}")
        a("s_waitcnt lgkmcnt(4)")
        for p in range(4): a(f"v_pk_add_f32 v[{32+2*p}:{33+2*p}], v[{32+2*p}:{33+2*p}], v[{40+2*p}:{41+2*p}]")
        a("s_waitcnt lgkmcnt(0)")
        for p in range(4): a(f"v_pk_add_f32 v[{48+2*p}:{49+2*p}], v[{48+2*p}:{49+2*p}], v[{56+2*p}:{57+2*p}]")
        for p in range(4): a(f"v_pk_add_f32 v[{32+2*p}:{33+2*p}], v[{32+2*p}:{33+2*p}], v[{48+2*p}:{49+2*p}]")
        for p in range(4): a(f"v_cvt_pk_bf16_f32 v{40+p}, v{32+2*p}, v{33+2*p}")
        a(f"s_waitcnt vmcnt({2})")
        hr = 12 + 4 * rnd
        for p in range(4):
            a(f"v_lshlrev_b32 v{32+2*p}, 16, v{40+p}")
            a(f"v_and_b32 v{33+2*p}, s18, v{40+p}")
            a(f"v_lshlrev_b32 v{48+2*p}, 16, v{hr+p}")
            a(f"v_and_b32 v{49+2*p}, s18, v{hr+p}")
        for p in range(4): a(f"v_pk_add_f32 v[{32+2*p}:{33+2*p}], v[{32+2*p}:{33+2*p}], v[{48+2*p}:{49+2*p}]")
        o = 64 + 4 * rnd
        for p in range(4): a(f"v_cvt_pk_bf16_f32 v{o+p}, v{32+2*p}, v{33+2*p}")
        a(f"buffer_store_dwordx4 v[{o}:{o+3}], v{7+rnd}, s[32:35], 0 offen sc1")
    a.label('K5_fin')
    G.stamp(a, 4)
    if G.STAMPS: a("s_waitcnt vmcnt(0)")
    G.stamp(a, 5)
    G.stamp_rt(a, 7)
    G.stamp_store(a, 8, 4, 3, 10, 4)
    a.label('K5_done')
    a("s_endpgm")
    return a.finish() + kd('gemm2_kernel', 256, 48, 256)

WS_PART = 0x3000000
SZ_PART = 78 * 3 * 4 * 2 * 5 * 1024
WS_FLAG = 0x3F00000
SZ_FLAG = 78 * 4 * 64
S5W = 24576
S5 = S5W + 10240
K6_SCR = 4 * S5
K6_LDS = K6_SCR + 1024
XF = os.environ.get('XF', 'sc0 sc1')
def k6():
    a = Asm()
    a.raw(khead('gemm2_kernel'))
    ACC, HF, WF = 64, 24, 124
    a(f"""
    s_cmp_ge_u32 s2, 234
    s_cbranch_scc1 K6_done
    """)
    G.stamp_rt(a, 6)
    G.stamp(a, 0)
    a(f"""
    s_load_dwordx4 s[4:7], s[0:1], {KA['wd']}
    s_load_dwordx2 s[10:11], s[0:1], {KA['ws']}
    v_lshrrev_b32 v1, 6, v0
    v_and_b32 v0, 63, v0
    v_readfirstlane_b32 s3, v1
    s_and_b32 s12, s2, 7
    s_lshr_b32 s13, s2, 3
    s_mul_i32 s14, s12, 29
    s_min_u32 s15, s12, 2
    s_add_u32 s14, s14, s15
    s_add_u32 s14, s14, s13
    s_mul_i32 s17, s14, 841
    s_lshr_b32 s17, s17, 16
    s_mul_i32 s15, s17, 78
    s_sub_u32 s18, s14, s15
    s_mul_i32 s15, s18, 21846
    s_lshr_b32 s15, s15, 16
    s_mul_i32 s16, s15, 3
    s_sub_u32 s16, s18, s16
    """)
    a(f"""
    s_mul_i32 s19, s3, 384
    s_movk_i32 s36, 1152
    """)
    for p in range(6):
        a(f"v_add_u32 v10, s19, v0")
        if p: a(f"v_add_u32 v10, {64*p}, v10")
        a("v_mul_u32_u24 v11, 2731, v10")
        a("v_lshrrev_b32 v11, 16, v11")
        a("v_mul_u32_u24 v12, 24, v11")
        a("v_sub_u32 v12, v10, v12")
        a("v_bfe_u32 v13, v11, 1, 1")
        a("v_bfe_u32 v14, v11, 3, 1")
        a("v_lshl_or_b32 v13, v14, 1, v13")
        a("v_lshlrev_b32 v13, 1, v13")
        a("v_xor_b32 v12, v12, v13")
        a("v_mul_u32_u24 v11, s36, v11")
        a(f"v_lshl_add_u32 v{1+p}, v12, 4, v11")
        if p % 3: a(f"v_subrev_u32 v{1+p}, {1024*(p%3)}, v{1+p}")
    a(f"""
    s_mul_i32 s19, s3, 3
    s_cmp_eq_u32 s3, 3
    s_cselect_b32 s19, 8, s19
    v_lshlrev_b32 v10, 4, v0
    s_mov_b32 s36, 147456
    """)
    for p in range(3):
        a(f"s_add_u32 s37, s19, {p}")
        a("s_lshr_b32 s38, s37, 1")
        a("s_mul_i32 s38, s38, s36")
        a("s_and_b32 s37, s37, 1")
        a("s_lshl_b32 s37, s37, 10")
        a("s_add_u32 s38, s38, s37")
        if p == 1: a("s_sub_u32 s38, s38, 1024")
        if p == 2:
            a("s_cmp_ge_u32 s3, 2")
            a("s_cselect_b32 s38, 0x7f000000, s38")
        a(f"v_add_u32 v{7+p}, s38, v10")
    a(f"""
    s_cmp_ge_u32 s3, 2
    s_cselect_b32 s39, 1, 0
    s_mul_i32 s32, s17, {1536*1152}
    s_mul_i32 s37, s16, 384
    s_add_u32 s32, s32, s37
    s_mul_i32 s33, s15, {5*147456}
    s_mul_i32 s37, s17, {48*1024}
    s_add_u32 s33, s33, s37
    s_mul_i32 s34, s3, 6144
    s_lshl_b32 s35, s19, 10
    s_add_u32 s35, s35, {S5W}
    s_waitcnt lgkmcnt(0)
    """)
    srd(a, 20, 4, G.SZ_W)
    srd(a, 24, 10, G.SZ_HH, G.WS_HH)
    def loads(slotreg):
        L = []
        L.append([f"s_add_u32 m0, s34, {slotreg}", "buffer_load_dwordx4 v1, s[20:23], s32 offen lds"])
        L.append(["buffer_load_dwordx4 v2, s[20:23], s32 offen offset:1024 lds"])
        L.append(["buffer_load_dwordx4 v3, s[20:23], s32 offen offset:2048 lds"])
        L.append(["s_add_u32 m0, m0, 3072", "buffer_load_dwordx4 v4, s[20:23], s32 offen lds"])
        L.append(["buffer_load_dwordx4 v5, s[20:23], s32 offen offset:1024 lds"])
        L.append(["buffer_load_dwordx4 v6, s[20:23], s32 offen offset:2048 lds", f"s_add_u32 s32, s32, {64*1152}"])
        L.append([f"s_add_u32 m0, s35, {slotreg}", "buffer_load_dwordx4 v7, s[24:27], s33 offen lds"])
        L.append(["buffer_load_dwordx4 v8, s[24:27], s33 offen offset:1024 lds"])
        L.append(["s_add_u32 s37, m0, 2048", "s_cmp_eq_u32 s39, 1", f"s_cselect_b32 m0, {K6_SCR}, s37",
                  "buffer_load_dwordx4 v9, s[24:27], s33 offen lds", "s_add_u32 s33, s33, 2048"])
        return L
    for st in range(3):
        for grp in loads(st * S5):
            for l in grp: a(l)
    srd(a, 28, 10, G.SZ_H, G.WS_H)
    srd(a, 44, 6, G.SZ_X)
    srd(a, 48, 10, SZ_PART, WS_PART)
    srd(a, 52, 10, SZ_FLAG, WS_FLAG)
    a(f"""
    v_lshrrev_b32 v10, 4, v0
    v_bfe_u32 v11, v0, 2, 2
    v_lshl_add_u32 v10, v10, 3, v11
    v_mul_u32_u24 v10, 384, v10
    v_and_b32 v11, 3, v0
    v_lshl_add_u32 v10, v11, 3, v10
    v_bfe_u32 v11, v0, 3, 2
    v_lshlrev_b32 v11, 5, v11
    s_mul_i32 s37, s3, 96
    """)
    for dt in range(3):
        a(f"s_add_u32 s38, s37, {32*dt}")
        a("v_xor_b32 v12, s38, v11")
        a(f"v_add_u32 v{16+dt}, v10, v12")
        a(f"v_add_u32 v{20+dt}, {2*S5}, v{16+dt}")
    a(f"v_lshlrev_b32 v19, 4, v0")
    a(f"v_add_u32 v19, {S5W}, v19")
    a(f"v_add_u32 v23, {2*S5}, v19")
    for i in range(60): a(f"v_mov_b32 v{ACC+i}, 0")
    G.stamp(a, 1)
    a("s_mov_b32 s40, 0")
    a.label('K6_loop')
    for sl in range(4):
        bo = 16 if sl < 2 else 20
        so = (sl & 1) * S5
        a("s_waitcnt vmcnt(18)")
        a("s_barrier")
        if sl == 1:
            a("s_cmp_eq_u32 s40, 5")
            a("s_cselect_b32 s32, 0x7f000000, s32")
            a("s_cselect_b32 s33, 0x7f000000, s33")
        ld = loads(((sl + 3) % 4) * S5)
        rd = []
        for ks in range(2):
            for dt in range(3):
                r = WF + 4 * (3 * ks + dt)
                rd.append((('W', ks, dt), [f"ds_read_b64_tr_b16 v[{r}:{r+1}], v{bo+dt} offset:{so + ks*32*384}",
                                           f"ds_read_b64_tr_b16 v[{r+2}:{r+3}], v{bo+dt} offset:{so + ks*32*384 + 4*384}"]))
            for tt in range(5):
                r = HF + 4 * (2 * tt + ks)
                rd.append((('H', ks, tt), [f"ds_read_b128 v[{r}:{r+3}], v{bo+3} offset:{so + (2*tt+ks)*1024}"]))
        lg = SB(a, 'lgkmcnt', 14)
        def issue_rd(n):
            for _ in range(n):
                if rd:
                    tag, ls = rd.pop(0)
                    for l in ls: a(l)
                    lg.issue(tag, len(ls))
        issue_rd(8)
        for l in ld.pop(0): a(l)
        for l in ld.pop(0): a(l)
        n = 0
        for ks in range(2):
            for tt in range(5):
                for dt in range(3):
                    lg.need({('W', ks, dt), ('H', ks, tt)})
                    c = ACC + 4 * (dt * 5 + tt)
                    rw = WF + 4 * (3 * ks + dt); rh = HF + 4 * (2 * tt + ks)
                    a(f"v_mfma_f32_16x16x32_bf16 v[{c}:{c+3}], v[{rw}:{rw+3}], v[{rh}:{rh+3}], v[{c}:{c+3}]")
                    issue_rd(1)
                    n += 1
                    if n % 4 == 0 and ld:
                        for l in ld.pop(0): a(l)
        assert not ld and not rd
    a("s_add_u32 s40, s40, 1")
    a("s_cmp_lt_u32 s40, 6")
    a("s_cbranch_scc1 K6_loop")
    G.stamp(a, 2)
    PB = 2560
    a(f"""
    v_lshlrev_b32 v10, 4, v0
    v_lshlrev_b32 v9, 3, v0
    s_mul_i32 s36, s18, {3*4*2*PB}
    s_mul_i32 s37, s3, {2*PB}
    s_add_u32 s36, s36, s37
    """)
    for dt in range(3):
        a(f"s_cmp_eq_u32 s17, {dt}")
        a(f"s_cbranch_scc1 K6_skip{dt}")
        a(f"s_cmp_lt_u32 s17, {dt}")
        a("s_cselect_b32 s37, 0, 1")
        a("s_sub_u32 s37, s17, s37")
        a(f"s_mul_i32 s37, s37, {PB}")
        a(f"s_add_u32 s37, s37, {dt*4*2*PB}")
        a("s_add_u32 s37, s37, s36")
        o = 124 + 12 * (dt & 1)
        for tt in range(5):
            c = ACC + 4 * (dt * 5 + tt)
            a(f"v_cvt_pk_bf16_f32 v{o+2*tt}, v{c}, v{c+1}")
            a(f"v_cvt_pk_bf16_f32 v{o+2*tt+1}, v{c+2}, v{c+3}")
            if tt == 1: a(f"buffer_store_dwordx4 v[{o}:{o+3}], v10, s[48:51], s37 offen {XF}")
            if tt == 3: a(f"buffer_store_dwordx4 v[{o+4}:{o+7}], v10, s[48:51], s37 offen offset:1024 {XF}")
            if tt == 4: a(f"buffer_store_dwordx2 v[{o+8}:{o+9}], v9, s[48:51], s37 offen offset:2048 {XF}")
        a.label(f'K6_skip{dt}')
    for dt in range(3):
        a(f"s_cmp_lg_u32 s17, {dt}")
        a(f"s_cbranch_scc1 K6_mv{dt}")
        for i in range(20): a(f"v_mov_b32 v{24+i}, v{ACC+20*dt+i}")
        a.label(f'K6_mv{dt}')
    a(f"""
    v_and_b32 v11, 15, v0
    s_mul_i32 s37, s15, 80
    v_add_u32 v11, s37, v11
    s_movk_i32 s38, 1152
    v_mul_u32_u24 v11, s38, v11
    v_lshrrev_b32 v12, 4, v0
    v_lshl_add_u32 v11, v12, 3, v11
    s_mul_i32 s37, s16, 384
    s_mul_i32 s38, s3, 96
    s_add_u32 s37, s37, s38
    s_lshl_b32 s38, s17, 5
    s_add_u32 s37, s37, s38
    v_add_u32 v11, s37, v11
    s_lshl_b32 s41, s18, 2
    s_add_u32 s41, s41, s3
    s_lshl_b32 s41, s41, 6
    v_mov_b32 v12, 0
    v_mov_b32 v13, 1
    s_waitcnt vmcnt(0)
    s_mov_b64 exec, 1
    buffer_atomic_add v13, v12, s[52:55], s41 offen sc1
    s_mov_b64 exec, -1
    """)
    for tt in range(5):
        a(f"s_mov_b32 s37, {tt*16*1152}")
        a(f"buffer_load_dwordx2 v[{44+2*tt}:{45+2*tt}], v11, s[28:31], s37 offen")
    G.stamp(a, 3)
    a(f"""
    s_mov_b32 s42, 0
    """)
    a.label('K6_poll')
    a(f"""
    buffer_load_dword v13, v12, s[52:55], s41 offen sc0 sc1
    s_waitcnt vmcnt(0)
    v_readfirstlane_b32 s43, v13
    s_add_u32 s42, s42, 1
    s_cmp_ge_u32 s43, 3
    s_cbranch_scc1 K6_go
    s_cmp_lt_u32 s42, 0x40000
    s_cbranch_scc0 K6_go
    s_sleep 1
    s_branch K6_poll
    """)
    a.label('K6_go')
    G.stamp(a, 4)
    a(f"""
    s_mul_i32 s37, s17, {4*2*PB}
    s_add_u32 s37, s37, s36
    s_add_u32 s38, s37, {PB}
    buffer_load_dwordx4 v[64:67], v10, s[48:51], s37 offen {XF}
    buffer_load_dwordx4 v[76:79], v10, s[48:51], s38 offen {XF}
    buffer_load_dwordx4 v[68:71], v10, s[48:51], s37 offen offset:1024 {XF}
    buffer_load_dwordx4 v[80:83], v10, s[48:51], s38 offen offset:1024 {XF}
    buffer_load_dwordx2 v[72:73], v9, s[48:51], s37 offen offset:2048 {XF}
    buffer_load_dwordx2 v[84:85], v9, s[48:51], s38 offen offset:2048 {XF}
    s_mov_b32 s38, 0xffff0000
    """)
    for tt in range(5):
        if tt == 0: a("s_waitcnt vmcnt(4)")
        if tt == 2: a("s_waitcnt vmcnt(4)")
        if tt == 4: a("s_waitcnt vmcnt(4)")
        c = 24 + 4 * tt; t0 = 88; h0 = 44 + 2 * tt
        for src in (64 + 2 * tt, 76 + 2 * tt):
            a(f"v_lshlrev_b32 v{t0}, 16, v{src}")
            a(f"v_and_b32 v{t0+1}, s38, v{src}")
            a(f"v_lshlrev_b32 v{t0+2}, 16, v{src+1}")
            a(f"v_and_b32 v{t0+3}, s38, v{src+1}")
            a(f"v_pk_add_f32 v[{c}:{c+1}], v[{c}:{c+1}], v[{t0}:{t0+1}]")
            a(f"v_pk_add_f32 v[{c+2}:{c+3}], v[{c+2}:{c+3}], v[{t0+2}:{t0+3}]")
        a(f"v_cvt_pk_bf16_f32 v14, v{c}, v{c+1}")
        a(f"v_cvt_pk_bf16_f32 v15, v{c+2}, v{c+3}")
        a(f"v_lshlrev_b32 v{c}, 16, v14")
        a(f"v_and_b32 v{c+1}, s38, v14")
        a(f"v_lshlrev_b32 v{c+2}, 16, v15")
        a(f"v_and_b32 v{c+3}, s38, v15")
        a(f"v_lshlrev_b32 v{t0}, 16, v{h0}")
        a(f"v_and_b32 v{t0+1}, s38, v{h0}")
        a(f"v_lshlrev_b32 v{t0+2}, 16, v{h0+1}")
        a(f"v_and_b32 v{t0+3}, s38, v{h0+1}")
        a(f"v_pk_add_f32 v[{c}:{c+1}], v[{c}:{c+1}], v[{t0}:{t0+1}]")
        a(f"v_pk_add_f32 v[{c+2}:{c+3}], v[{c+2}:{c+3}], v[{t0+2}:{t0+3}]")
        a(f"v_cvt_pk_bf16_f32 v{h0}, v{c}, v{c+1}")
        a(f"v_cvt_pk_bf16_f32 v{h0+1}, v{c+2}, v{c+3}")
        a(f"s_mov_b32 s37, {tt*16*1152}")
        a(f"buffer_store_dwordx2 v[{h0}:{h0+1}], v11, s[44:47], s37 offen")
    if G.STAMPS: a("s_waitcnt vmcnt(0)")
    G.stamp(a, 5)
    G.stamp_rt(a, 7)
    G.stamp_store(a, 8, 4, 3, 10, 4)
    a.label('K6_done')
    a("s_endpgm")
    return a.finish() + kd('gemm2_kernel', 152, 58, 152)

def launches():
    return {
        'k4': f"; @launch kernel=gemm1_kernel grid=(256,1,1) block=(512,1,1) lds={K4_LDS}",
        'k6': f"; @launch kernel=gemm2_kernel grid=(234,1,1) block=(256,1,1) lds={K6_LDS}",
        'k5': f"; @launch kernel=gemm2_kernel grid=({K5_NWG},1,1) block=(256,1,1) lds={K5_LDS}",
    }
def fns():
    return dict(k4=k4, k5=k5, k6=k6)
```

```python
import sys, struct
from asmlib import Asm, kd, khead

S, D, F = 2048, 576, 4608
KA = dict(q=0, k=8, v=16, shk=24, ssmk=32, ssmd=40, bx=48, wg=56, wu=64, wd=72, out=80, dbg=88, ws=96)
KVR_PITCH = 4736
WS_KVR = 0;            SZ_KVR = D * KVR_PITCH
WS_ZB = 0x400000;      SZ_ZB = S * D * 2
WS_H = 0x800000;       SZ_H = S * D * 2
WS_HN = 0xC00000;      SZ_HN = S * D * 2
WS_HH = 0x1000000;     SZ_HH = S * F * 2
SZ_X = S * D * 2
SZ_W = D * F * 2

import os
STAMPS = os.environ.get('STAMPS', '') != ''
ST1 = os.environ.get('ST1', 'nt')
ST2 = os.environ.get('ST2', 'nt')
PREFETCH = os.environ.get('PREFETCH', '1') == '1'
WS_ST = 0x4000000
def stamp(a, i):
    if not STAMPS: return
    a(f"s_memtime s[{60+2*i}:{61+2*i}]")
    a("s_waitcnt lgkmcnt(0)")
def stamp_nw(a, i):
    if not STAMPS: return
    a(f"s_memtime s[{60+2*i}:{61+2*i}]")
def stamp_rt(a, i):
    if not STAMPS: return
    a(f"s_memrealtime s[{60+2*i}:{61+2*i}]")
    a("s_waitcnt lgkmcnt(0)")
def stamp_store(a, n, kidx, wavesgpr, wsptr, nw):
    if not STAMPS: return
    a(f"s_add_u32 s52, s{wsptr}, {WS_ST + kidx*0x100000}")
    a(f"s_addc_u32 s53, s{wsptr+1}, 0")
    a("s_mov_b32 s54, 0x100000")
    a("s_mov_b32 s55, 0x00020000")
    a(f"s_mul_i32 s56, s2, {nw}")
    if wavesgpr is not None: a(f"s_add_u32 s56, s56, s{wavesgpr}")
    a("s_lshl_b32 s56, s56, 7")
    a("s_mov_b64 exec, 1")
    a("v_mov_b32 v0, 0")
    for i in range(n):
        a(f"v_mov_b32 v1, s{60+2*i}")
        a(f"buffer_store_dword v1, v0, s[52:55], s56 offen offset:{4*i}")
    a("s_waitcnt vmcnt(0)")

def f32(x):
    return '0x%08x' % struct.unpack('<I', struct.pack('<f', x))[0]

def srd(a, d, b, size, off=0):
    if off:
        a(f"s_add_u32 s{d}, s{b}, {off}")
        a(f"s_addc_u32 s{d+1}, s{b+1}, 0")
    else:
        a(f"s_mov_b32 s{d}, s{b}")
        a(f"s_mov_b32 s{d+1}, s{b+1}")
    a(f"s_mov_b32 s{d+2}, {size}")
    a(f"s_mov_b32 s{d+3}, 0x00020000")

def k1():
    a = Asm()
    a.raw(khead('prep_kernel'))
    a(f"""
    s_cmp_ge_u32 s2, 576
    s_cbranch_scc1 K1_done
    """)
    stamp_rt(a, 6)
    stamp(a, 0)
    a(f"""
    s_load_dwordx4 s[4:7], s[0:1], {KA['k']}
    s_load_dwordx2 s[8:9], s[0:1], {KA['shk']}
    s_load_dwordx2 s[10:11], s[0:1], {KA['ws']}
    s_and_b32 s3, s2, 7
    s_mul_i32 s3, s3, 72
    s_lshr_b32 s12, s2, 3
    s_add_u32 s3, s3, s12
    s_lshr_b32 s12, s3, 6
    s_and_b32 s13, s3, 63
    v_and_b32 v1, 15, v0
    v_lshrrev_b32 v2, 4, v0
    s_lshl_b32 s14, s12, 6
    v_lshl_add_u32 v3, v1, 2, s14
    s_lshl_b32 s15, s13, 5
    v_lshl_add_u32 v4, v2, 3, s15
    s_movk_i32 s16, 1152
    v_mul_u32_u24 v5, s16, v4
    v_lshl_add_u32 v5, v3, 1, v5
    v_add_u32 v6, 4608, v5
    v_subrev_u32 v7, 3456, v5
    v_cmp_eq_u32 vcc, 0, v4
    v_mov_b32 v8, 0x80000000
    v_cndmask_b32 v7, v7, v8, vcc
    v_lshlrev_b32 v9, 3, v3
    s_waitcnt lgkmcnt(0)
    """)
    stamp(a, 1)
    srd(a, 20, 4, SZ_X)
    srd(a, 24, 6, SZ_X)
    srd(a, 28, 8, D * 8)
    srd(a, 32, 10, SZ_KVR, WS_KVR)
    KR = 16
    VR = 40
    WR = 56
    a(f"buffer_load_dwordx4 v[{WR}:{WR+3}], v9, s[28:31], 0 offen")
    a(f"buffer_load_dwordx4 v[{WR+4}:{WR+7}], v9, s[28:31], 0 offen offset:16")
    for r in range(11):
        vo, off = ('v7', r * 1152) if r < 3 else (('v5', (r - 3) * 1152) if r < 7 else ('v6', (r - 7) * 1152))
        a(f"buffer_load_dwordx2 v[{KR+2*r}:{KR+2*r+1}], {vo}, s[20:23], 0 offen offset:{off}")
    for r in range(8):
        vo, off = ('v5', r * 1152) if r < 4 else ('v6', (r - 4) * 1152)
        a(f"buffer_load_dwordx2 v[{VR+2*r}:{VR+2*r+1}], {vo}, s[24:27], 0 offen offset:{off}")
    a(f"""
    s_add_u32 s17, s14, s13
    s_mul_i32 s17, s17, {KVR_PITCH}
    v_lshlrev_b32 v10, 4, v0
    v_add_u32 v10, 4224, v10
    v_cmp_eq_u32 vcc, 32, v0
    v_mov_b32 v11, 112
    v_cndmask_b32 v10, v10, v11, vcc
    v_cmp_lt_u32 vcc, 32, v0
    v_cndmask_b32 v10, v10, v8, vcc
    v_mov_b32 v12, 0
    v_mov_b32 v13, 0
    v_mov_b32 v14, 0
    v_mov_b32 v15, 0
    buffer_store_dwordx4 v[12:15], v10, s[32:35], s17 offen
    s_add_u32 s36, s10, 0x3F00000
    s_addc_u32 s37, s11, 0
    s_mov_b32 s38, {78*4*64}
    s_mov_b32 s39, 0x00020000
    s_lshl_b32 s17, s2, 10
    v_lshlrev_b32 v10, 4, v0
    buffer_store_dwordx4 v[12:15], v10, s[36:39], s17 offen sc0 sc1
    """)
    a(f"""
    s_movk_i32 s16, {KVR_PITCH}
    v_mul_u32_u24 v10, s16, v3
    v_lshlrev_b32 v11, 1, v4
    v_sub_u32 v10, v10, v11
    v_add_u32 v10, 4208, v10
    v_add_u32 v11, {2*KVR_PITCH}, v10
    s_mov_b32 s18, 0xffff0000
    """)
    WF = 64
    a("s_waitcnt vmcnt(21)")
    for e in range(4):
        for t in range(4):
            src = WR + 2 * e + (t >> 1)
            dst = WF + ((e >> 1) * 4 + t) * 2 + (e & 1)
            if t & 1: a(f"v_and_b32 v{dst}, s18, v{src}")
            else: a(f"v_lshlrev_b32 v{dst}, 16, v{src}")
    KF = 80
    a("s_waitcnt vmcnt(10)")
    stamp(a, 2)
    for r in range(11):
        for p in range(2):
            src = KR + 2 * r + p
            a(f"v_lshlrev_b32 v{KF+4*r+2*p}, 16, v{src}")
            a(f"v_and_b32 v{KF+4*r+2*p+1}, s18, v{src}")
    AC = 16
    AC = 124
    for r in range(8):
        for p in range(2):
            d = AC + 4 * r + 2 * p
            kf = lambda rr: f"v[{KF+4*rr+2*p}:{KF+4*rr+2*p+1}]"
            wf = lambda t: f"v[{WF+(p*4+t)*2}:{WF+(p*4+t)*2+1}]"
            a(f"v_pk_mul_f32 v[{d}:{d+1}], {kf(r)}, {wf(3)}")
            a(f"v_pk_fma_f32 v[{d}:{d+1}], {kf(r+1)}, {wf(2)}, v[{d}:{d+1}]")
            a(f"v_pk_fma_f32 v[{d}:{d+1}], {kf(r+2)}, {wf(1)}, v[{d}:{d+1}]")
            a(f"v_pk_fma_f32 v[{d}:{d+1}], {kf(r+3)}, {wf(0)}, v[{d}:{d+1}]")
    a("s_waitcnt vmcnt(2)")
    stamp(a, 3)
    VF = 16
    for r in range(8):
        for p in range(2):
            src = VR + 2 * r + p
            t = VF + 2 * ((2 * r + p) % 8)
            d = AC + 4 * r + 2 * p
            a(f"v_lshlrev_b32 v{t}, 16, v{src}")
            a(f"v_and_b32 v{t+1}, s18, v{src}")
            a(f"v_pk_mul_f32 v[{d}:{d+1}], v[{d}:{d+1}], v[{t}:{t+1}]")
    OUT = 80
    for e in range(4):
        for j in range(4):
            a(f"v_cvt_pk_bf16_f32 v{OUT+4*e+j}, v{AC+4*(7-2*j)+e}, v{AC+4*(6-2*j)+e}")
        vo = 'v10' if e < 2 else 'v11'
        if e & 1:
            a(f"v_add_u32 {vo}, {KVR_PITCH}, {vo}")
        a(f"buffer_store_dwordx4 v[{OUT+4*e}:{OUT+4*e+3}], {vo}, s[32:35], 0 offen {ST1}")
    stamp(a, 4)
    if STAMPS: a("s_waitcnt vmcnt(0)")
    stamp(a, 5)
    stamp_rt(a, 7)
    stamp_store(a, 8, 0, None, 10, 1)
    a.label('K1_done')
    a("s_endpgm")
    return a.finish() + kd('prep_kernel', 160, 40, 160)

A_STRIDE = 4416
BB = 17664
B_STRIDE = 4640
K2_LDS = BB + B_STRIDE + 4608
def k2():
    a = Asm()
    a.raw(khead('conv_kernel'))
    a(f"""
    s_cmp_ge_u32 s2, 576
    s_cbranch_scc1 K2_done
    """)
    stamp_rt(a, 6)
    stamp(a, 0)
    a(f"""
    s_load_dwordx4 s[4:7], s[0:1], {KA['ssmk']}
    s_load_dwordx2 s[10:11], s[0:1], {KA['ws']}
    s_load_dwordx4 s[36:39], s[0:1], {KA['wg']}
    s_load_dwordx2 s[8:9], s[0:1], {KA['q']}
    s_and_b32 s3, s2, 7
    s_mul_i32 s3, s3, 72
    s_lshr_b32 s12, s2, 3
    s_add_u32 s3, s3, s12
    v_lshlrev_b32 v1, 4, v0
    v_mov_b32 v2, 0
    s_lshl_b32 s13, s3, 12
    s_mul_i32 s14, s3, {KVR_PITCH}
    s_lshl_b32 s15, s3, 1
    s_waitcnt lgkmcnt(0)
    """)
    srd(a, 20, 4, SZ_X)
    srd(a, 24, 6, D * 2)
    srd(a, 28, 10, SZ_KVR, WS_KVR)
    srd(a, 32, 10, SZ_ZB, WS_ZB)
    for b in range(2):
        a(f"s_add_u32 s16, s14, {128 - 8*b}")
        a(f"s_mov_b32 m0, {BB + b*B_STRIDE}")
        for i in range(4):
            a(f"buffer_load_dwordx4 v1, s[28:31], s16 offen offset:{i*1024} lds")
        a(f"s_add_u32 s16, s16, 4096")
        a(f"s_mov_b32 m0, {BB + b*B_STRIDE + 4096}")
        a("s_mov_b64 exec, 0xffffffff")
        a(f"buffer_load_dwordx4 v1, s[28:31], s16 offen lds")
        a("s_mov_b64 exec, -1")
    a("buffer_load_dwordx2 v[4:5], v2, s[20:23], s13 offen")
    a("buffer_load_ushort v6, v2, s[24:27], s15 offen")
    for r in range(4):
        a(f"s_add_u32 s16, s13, {2*(r+1)}")
        a(f"s_mov_b32 m0, {r*A_STRIDE + 64}")
        for i in range(4):
            a(f"buffer_load_dwordx4 v1, s[20:23], s16 offen offset:{i*1024} lds")
    a(f"""
    v_lshrrev_b32 v7, 3, v0
    s_movk_i32 s16, {A_STRIDE}
    v_mul_u32_u24 v7, s16, v7
    v_and_b32 v8, 7, v0
    v_lshlrev_b32 v9, 4, v8
    v_add_u32 v10, {4160-64}, v9
    v_cmp_gt_u32 vcc, 4, v8
    v_cndmask_b32 v9, v10, v9, vcc
    v_add_u32 v7, v7, v9
    v_mov_b32 v12, 0
    v_mov_b32 v13, 0
    v_mov_b32 v14, 0
    v_mov_b32 v15, 0
    s_mov_b64 exec, 0xffffffff
    ds_write_b128 v7, v[12:15]
    s_mov_b64 exec, -1
    """)
    a(f"""
    v_and_b32 v7, 3, v0
    v_mul_u32_u24 v7, s16, v7
    v_bfe_u32 v8, v0, 2, 2
    v_lshrrev_b32 v9, 4, v0
    v_add_u32 v8, v8, v9
    v_lshl_add_u32 v7, v8, 4, v7
    """)
    a(f"""
    v_and_b32 v10, 1, v0
    v_bfe_u32 v11, v0, 1, 3
    s_movk_i32 s17, {B_STRIDE}
    v_mul_u32_u24 v8, s17, v10
    v_lshl_add_u32 v8, v9, 4, v8
    v_lshlrev_b32 v16, 6, v11
    v_sub_u32 v8, v8, v16
    v_add_u32 v8, {BB+448}, v8
    """)
    a(f"""
    v_lshlrev_b32 v17, 4, v9
    v_add_u32 v17, v17, v16
    v_lshl_add_u32 v17, v10, 3, v17
    v_sub_u32 v17, {BB+504}, v17
    """)
    a(f"""
    v_lshl_add_u32 v18, v11, 2, v9
    s_movk_i32 s17, 9216
    v_mul_u32_u24 v18, s17, v18
    v_lshl_add_u32 v18, v10, 3, v18
    s_lshl_b32 s18, s3, 4
    """)
    a(f"""
    v_sub_u32 v19, 3, v0
    v_lshlrev_b32 v19, 4, v19
    v_mul_u32_u24 v20, s16, v0
    s_waitcnt vmcnt(17)
    v_lshlrev_b64 v[4:5], v19, v[4:5]
    s_mov_b64 exec, 0xf
    ds_write_b64 v20, v[4:5] offset:56
    s_mov_b64 exec, -1
    """)
    if PREFETCH:
        srd(a, 40, 36, SZ_W)
        srd(a, 44, 38, SZ_W)
        srd(a, 48, 8, SZ_X)
        a(f"""
        s_mul_i32 s36, s12, 48
        v_add_u32 v24, s36, v0
        v_mul_u32_u24 v25, 3641, v24
        v_lshrrev_b32 v25, 16, v25
        v_mul_u32_u24 v26, 18, v25
        v_sub_u32 v26, v24, v26
        v_mul_u32_u24 v25, s17, v25
        v_lshl_add_u32 v25, v26, 6, v25
        v_mov_b32 v26, 0x7f000000
        v_cmp_gt_u32 vcc, 48, v0
        v_cndmask_b32 v25, v26, v25, vcc
        s_and_b32 s37, s2, 7
        s_mul_i32 s38, s37, 1152
        s_lshl_b32 s36, s12, 6
        v_add_u32 v24, s36, v0
        s_mov_b32 s36, 58255
        v_mul_u32_u24 v26, s36, v24
        v_lshrrev_b32 v26, 23, v26
        v_mul_u32_u24 v27, 144, v26
        v_sub_u32 v27, v24, v27
        s_mov_b32 s36, {8*9216}
        v_mul_u32_u24 v26, s36, v26
        v_lshl_add_u32 v26, v27, 6, v26
        s_mul_i32 s39, s37, 9216
        """)
    ACC = 32
    AF = 64
    NAF = 6
    BX = 88
    for i in range(32):
        a(f"v_mov_b32 v{ACC+i}, 0")
    def breg(q):
        qp = 56 - q
        return f"a[{4*qp}:{4*qp+3}]" if qp < 64 else f"v[{BX}:{BX+3}]"
    def bread(q):
        a(f"ds_read_b128 {breg(q)}, v8 offset:{64*(56-q)}")
    def areg(m):
        r = AF + 4 * (m % NAF)
        return f"v[{r}:{r+3}]"
    def aread(m):
        a(f"ds_read_b128 {areg(m)}, v7 offset:{64*m}")
    pend = []
    def issue(tag, fn):
        fn(); pend.append(tag)
    def wait_for(tags):
        idx = max([i for i, t in enumerate(pend) if t in tags], default=-1)
        if idx < 0: return
        n = len(pend) - 1 - idx
        a(f"s_waitcnt lgkmcnt({min(n,15)})")
        del pend[:idx + 1]
    pend += ['w0', 'w1']
    def bq_for(m):
        return [8 * T - m for T in range(8) if 8 * T - m >= -8]
    loaded = set()
    for q in bq_for(0):
        issue(('B', q), lambda q=q: bread(q)); loaded.add(q)
    stamp(a, 1)
    if STAMPS: pend.clear()
    a("s_waitcnt vmcnt(0)")
    stamp(a, 2)
    if PREFETCH:
        a("buffer_load_dword v28, v26, s[48:51], s39 offen")
        a("buffer_load_dword v29, v25, s[40:43], s38 offen")
        a("buffer_load_dword v30, v25, s[44:47], s38 offen")
    for m in range(3):
        issue(('A', m), lambda m=m: aread(m))
    for m in range(65):
        pf = []
        if m + 1 <= 8:
            pf += [('B', q) for q in bq_for(m + 1) if q not in loaded]
        if m + 3 <= 64:
            pf.append(('A', m + 3))
        Ts = [T for T in range(8) if 8 * T - m >= -8]
        first = True
        for T in Ts:
            q = 8 * T - m
            wait_for({('A', m), ('B', q)})
            a(f"v_mfma_f32_16x16x32_bf16 v[{ACC+4*T}:{ACC+4*T+3}], {areg(m)}, {breg(q)}, v[{ACC+4*T}:{ACC+4*T+3}]")
            k = -(-len(pf) // max(1, (len(Ts) - Ts.index(T))))
            for _ in range(k):
                if len(pend) >= 14:
                    wait_for({pend[len(pend) - 13]})
                tag = pf.pop(0)
                if tag[0] == 'B':
                    issue(tag, lambda q=tag[1]: bread(q)); loaded.add(tag[1])
                else:
                    issue(tag, lambda mm=tag[1]: aread(mm))
    stamp(a, 3)
    KV = 64
    for T in range(8):
        a(f"ds_read_b64 v[{KV+2*T}:{KV+2*T+1}], v17 offset:{512*(7-T)}")
    a("v_lshlrev_b32 v6, 16, v6")
    a("s_mov_b32 s19, 0xffff0000")
    for T in range(8):
        a(f"s_waitcnt lgkmcnt({7-T})")
        k0, k1_ = KV + 2 * T, KV + 2 * T + 1
        t = 80 + 4 * (T & 1)
        a(f"v_and_b32 v{t}, s19, v{k1_}")
        a(f"v_lshlrev_b32 v{t+1}, 16, v{k1_}")
        a(f"v_and_b32 v{t+2}, s19, v{k0}")
        a(f"v_lshlrev_b32 v{t+3}, 16, v{k0}")
        for r in range(4):
            a(f"v_fmac_f32 v{ACC+4*T+r}, v6, v{t+r}")
        o = 20 + 2 * (T % 4)
        a(f"v_cvt_pk_bf16_f32 v{o}, v{ACC+4*T}, v{ACC+4*T+1}")
        a(f"v_cvt_pk_bf16_f32 v{o+1}, v{ACC+4*T+2}, v{ACC+4*T+3}")
        a(f"buffer_store_dwordx2 v[{o}:{o+1}], v18, s[32:35], s18 offen {ST2}")
        if T < 7:
            a(f"s_add_u32 s18, s18, 294912")
    stamp(a, 4)
    if STAMPS: a("s_waitcnt vmcnt(0)")
    stamp(a, 5)
    stamp_rt(a, 7)
    stamp_store(a, 8, 1, None, 10, 1)
    a.label('K2_done')
    a("s_endpgm")
    return a.finish() + kd('conv_kernel', 352, 56, 96)

K3_LDS = 9216 + 2 * 640
def k3():
    a = Asm()
    a.raw(khead('ln_kernel'))
    a(f"""
    s_cmp_ge_u32 s2, 256
    s_cbranch_scc1 K3_done
    """)
    stamp_rt(a, 6)
    stamp(a, 0)
    a(f"""
    s_load_dwordx2 s[4:5], s[0:1], {KA['q']}
    s_load_dwordx2 s[10:11], s[0:1], {KA['ws']}
    v_lshrrev_b32 v1, 6, v0
    v_and_b32 v2, 63, v0
    v_readfirstlane_b32 s3, v1
    v_and_b32 v3, 7, v0
    v_lshrrev_b32 v4, 3, v0
    s_lshl_b32 s12, s2, 3
    v_add_u32 v5, s12, v3
    s_movk_i32 s13, 1152
    v_mul_u32_u24 v5, s13, v5
    v_lshl_add_u32 v5, v4, 4, v5
    v_lshlrev_b32 v6, 4, v0
    s_mul_i32 s14, s2, 9216
    s_lshl_b32 s15, s3, 10
    s_waitcnt lgkmcnt(0)
    """)
    srd(a, 20, 4, SZ_X)
    srd(a, 24, 10, SZ_ZB, WS_ZB)
    srd(a, 28, 10, SZ_H, WS_H)
    srd(a, 32, 10, SZ_HN, WS_HN)
    a(f"""
    buffer_load_dwordx4 v[8:11], v5, s[20:23], 0 offen
    s_mov_b32 m0, s15
    buffer_load_dwordx4 v6, s[24:27], s14 offen lds
    """)
    a(f"""
    v_lshrrev_b32 v7, 4, v2
    v_lshlrev_b32 v7, 8, v7
    v_bfe_u32 v12, v2, 1, 1
    v_lshl_add_u32 v7, v12, 7, v7
    v_bfe_u32 v12, v2, 2, 2
    v_lshl_add_u32 v7, v12, 4, v7
    v_and_b32 v12, 1, v2
    v_lshl_add_u32 v7, v12, 3, v7
    v_add_u32 v7, s15, v7
    """)
    a(f"""
    s_lshr_b32 s16, s2, 2
    s_mul_i32 s16, s16, {36*1024}
    s_and_b32 s17, s2, 3
    s_lshl_b32 s17, s17, 7
    s_add_u32 s16, s16, s17
    v_lshrrev_b32 v12, 1, v4
    v_lshlrev_b32 v12, 10, v12
    v_and_b32 v13, 1, v4
    v_lshl_add_u32 v12, v13, 9, v12
    v_lshl_add_u32 v12, v3, 4, v12
    """)
    a(f"""
    v_mul_u32_u24 v13, 80, v3
    v_add_u32 v13, 9216, v13
    s_lshl_b32 s17, s3, 3
    v_add_u32 v14, s17, v13
    s_mov_b32 s18, 0xffff0000
    s_mov_b32 s19, {f32(1.0/576)}
    s_mov_b32 s36, {f32(1e-5)}
    s_waitcnt vmcnt(1)
    """)
    stamp(a, 1)
    X = 16
    for j in range(4):
        a(f"v_lshlrev_b32 v{X+2*j}, 16, v{8+j}")
        a(f"v_and_b32 v{X+2*j+1}, s18, v{8+j}")
    def stats(src, ldsoff, tag):
        a(f"v_add_f32 v32, v{src}, v{src+1}")
        a(f"v_mul_f32 v33, v{src}, v{src}")
        a(f"v_fmac_f32 v33, v{src+1}, v{src+1}")
        for j in range(2, 8):
            a(f"v_add_f32 v32, v32, v{src+j}")
            a(f"v_fmac_f32 v33, v{src+j}, v{src+j}")
        a("v_add_f32_dpp v32, v32, v32 row_ror:8 row_mask:0xf bank_mask:0xf")
        a("v_add_f32_dpp v33, v33, v33 row_ror:8 row_mask:0xf bank_mask:0xf")
        a("v_mov_b32 v34, v32")
        a("v_mov_b32 v35, v33")
        a("v_permlane16_swap_b32 v32, v34")
        a("v_permlane16_swap_b32 v33, v35")
        a("v_add_f32 v32, v32, v34")
        a("v_add_f32 v33, v33, v35")
        a("v_mov_b32 v34, v32")
        a("v_mov_b32 v35, v33")
        a("v_permlane32_swap_b32 v32, v34")
        a("v_permlane32_swap_b32 v33, v35")
        a("v_add_f32 v32, v32, v34")
        a("v_add_f32 v33, v33, v35")
        a("s_mov_b64 exec, 0xff")
        a(f"ds_write_b64 v14, v[32:33] offset:{ldsoff}")
        a("s_mov_b64 exec, -1")
        a("s_waitcnt lgkmcnt(0)")
        a("s_barrier")
        for j in range(4):
            a(f"ds_read_b128 v[{44+4*j}:{47+4*j}], v13 offset:{ldsoff+16*j}")
        a(f"ds_read_b64 v[60:61], v13 offset:{ldsoff+64}")
        a("s_waitcnt lgkmcnt(0)")
        a("v_pk_add_f32 v[44:45], v[44:45], v[46:47]")
        a("v_pk_add_f32 v[48:49], v[48:49], v[50:51]")
        a("v_pk_add_f32 v[52:53], v[52:53], v[54:55]")
        a("v_pk_add_f32 v[56:57], v[56:57], v[58:59]")
        a("v_pk_add_f32 v[44:45], v[44:45], v[48:49]")
        a("v_pk_add_f32 v[52:53], v[52:53], v[56:57]")
        a("v_pk_add_f32 v[44:45], v[44:45], v[60:61]")
        a("v_pk_add_f32 v[44:45], v[44:45], v[52:53]")
        a("v_mul_f32 v40, s19, v44")
        a("v_mul_f32 v41, s19, v45")
        a("v_fma_f32 v41, -v40, v40, v41")
        a("v_max_f32 v41, 0, v41")
        a("v_cvt_pk_bf16_f32 v42, v40, v41")
        a("v_lshlrev_b32 v40, 16, v42")
        a("v_and_b32 v41, s18, v42")
        a("v_add_f32 v41, s36, v41")
        a("v_cvt_pk_bf16_f32 v41, v41, v41")
        a("v_and_b32 v41, s18, v41")
        a("v_sqrt_f32 v41, v41")
        a("v_cvt_pk_bf16_f32 v41, v41, v41")
        a("v_and_b32 v41, s18, v41")
        a("v_rcp_f32 v41, v41")
    stats(X, 0, 'a')
    stamp(a, 2)
    a("s_waitcnt vmcnt(0)")
    stamp(a, 3)
    a("ds_read_b64_tr_b16 v[36:37], v7")
    a("ds_read_b64_tr_b16 v[38:39], v7 offset:64")
    Hh = 24
    for j in range(8):
        a(f"v_sub_f32 v{Hh+j}, v{X+j}, v40")
    for j in range(8):
        a(f"v_mul_f32 v{Hh+j}, v{Hh+j}, v41")
    a("s_waitcnt lgkmcnt(0)")
    for j in range(4):
        a(f"v_lshlrev_b32 v{44+2*j}, 16, v{36+j}")
        a(f"v_and_b32 v{45+2*j}, s18, v{36+j}")
    for j in range(8):
        a(f"v_fma_f32 v{Hh+j}, v{Hh+j}, v{44+j}, v{X+j}")
    for j in range(4):
        a(f"v_cvt_pk_bf16_f32 v{8+j}, v{Hh+2*j}, v{Hh+2*j+1}")
    a(f"buffer_store_dwordx4 v[8:11], v5, s[28:31], 0 offen sc1")
    for j in range(4):
        a(f"v_lshlrev_b32 v{X+2*j}, 16, v{8+j}")
        a(f"v_and_b32 v{X+2*j+1}, s18, v{8+j}")
    stats(X, 640, 'b')
    for j in range(8):
        a(f"v_sub_f32 v{Hh+j}, v{X+j}, v40")
    for j in range(8):
        a(f"v_mul_f32 v{Hh+j}, v{Hh+j}, v41")
    for j in range(4):
        a(f"v_cvt_pk_bf16_f32 v{36+j}, v{Hh+2*j}, v{Hh+2*j+1}")
    a(f"buffer_store_dwordx4 v[36:39], v12, s[32:35], s16 offen sc1")
    stamp(a, 4)
    if STAMPS: a("s_waitcnt vmcnt(0)")
    stamp(a, 5)
    stamp_rt(a, 7)
    stamp_store(a, 8, 2, 3, 10, 9)
    a.label('K3_done')
    a("s_endpgm")
    return a.finish() + kd('ln_kernel', 64, 40, 64)

HEADER = """; sequential_preLN -> ssm_conv_h3 -> glu_gated_geglu : multi-kernel pipeline (generated by dev/gen.py)
"""
def build(kernels):
    launches = {
        'k1': "; @launch kernel=prep_kernel grid=(576,1,1) block=(64,1,1) lds=0",
        'k2': f"; @launch kernel=conv_kernel grid=(576,1,1) block=(64,1,1) lds={K2_LDS}",
        'k3': f"; @launch kernel=ln_kernel grid=(256,1,1) block=(576,1,1) lds={K3_LDS}",
    }
    try:
        import gen_gemm
        launches.update(gen_gemm.launches())
        fns = dict(k1=k1, k2=k2, k3=k3, **gen_gemm.fns())
    except ImportError:
        fns = dict(k1=k1, k2=k2, k3=k3)
    s = HEADER
    for k in kernels: s += launches[k] + '\n'
    s += '.amdgcn_target "amdgcn-amd-amdhsa--gfx950"\n.text\n'
    for k in dict.fromkeys(kernels): s += fns[k]()
    return s

if __name__ == '__main__':
    ks = sys.argv[2:] if len(sys.argv) > 2 else ['k1', 'k2', 'k3', 'k4', 'k6']
    open(sys.argv[1], 'w').write(build(ks))
```

```python
from asmlib import Asm, kd, khead
import gen as G
from gen import KA, srd, f32, S, D, F
from gen_gemm import SB, STG, UPOFF, K4_SCR, WS_PART, SZ_PART, WS_FLAG, S5, S5W
import math, os
DBG = os.environ.get('DBG', '')
KM = int(os.environ.get('KM', '5'))
PRIO = os.environ.get('PRIO', '1')
TPF = int(os.environ.get('TPF', '16'))
XF = os.environ.get('XF', 'sc0 sc1')
LDF = os.environ.get('LDF', 'sc1')
FUSE2 = os.environ.get('FUSE2', '1') == '1'
FD = int(os.environ.get('FD', '0'))
LN_Z = K4_SCR + 1024
LN_X = LN_Z + 8192
LN_S = LN_X + 2048
KB_LDS = LN_S + 1280
SZ_FLAG = 0xA000
FL_LN = 0x8000
FL_HH = 0x9000
K6_SCR = 4 * S5

def poll(a, name, voff, soff, target_sgpr_or_imm, tmpv, srdf):
    a("s_mov_b32 s58, 0")
    a.label(f'{name}_poll')
    a(f"""
    buffer_load_dword v{tmpv}, v{voff}, {srdf}, {soff} offen sc0 sc1
    s_waitcnt vmcnt(0)
    v_readfirstlane_b32 s59, v{tmpv}
    s_add_u32 s58, s58, 1
    s_cmp_ge_u32 s59, {target_sgpr_or_imm}
    s_cbranch_scc1 {name}_go
    s_cmp_lt_u32 s58, 0x40000
    s_cbranch_scc0 {name}_go
    s_sleep 1
    s_branch {name}_poll
    """)
    a.label(f'{name}_go')

def kb():
    a = Asm()
    a.raw(khead('mlp_kernel'))
    NTOK = max(12, 36 - 4 * KM)
    ACC, TOK, AF = 112, 112 - 4 * NTOK, 24
    DS_ = ACC
    NAF = (TOK - AF) // 4; PF = int(os.environ.get('PF', '5'))
    a(f"""
    s_cmp_ge_u32 s2, 256
    s_cbranch_scc1 KB_done
    """)
    G.stamp_rt(a, 6)
    G.stamp(a, 0)
    a(f"""
    s_load_dwordx2 s[8:9], s[0:1], {KA['q']}
    s_load_dwordx2 s[10:11], s[0:1], {KA['ws']}
    s_load_dwordx4 s[4:7], s[0:1], {KA['wg']}
    s_load_dwordx4 s[44:47], s[0:1], {KA['wd']}
    v_lshrrev_b32 v1, 6, v0
    v_and_b32 v0, 63, v0
    v_readfirstlane_b32 s3, v1
    s_and_b32 s12, s2, 7
    s_lshr_b32 s13, s2, 3
    s_lshl_b32 s12, s12, 2
    s_and_b32 s14, s13, 3
    s_add_u32 s12, s12, s14
    s_lshr_b32 s43, s13, 2
    s_lshl_b32 s13, s43, 3
    s_add_u32 s13, s13, s3
    s_lshl_b32 s39, s43, 5
    s_add_u32 s39, s39, s12
    """)
    L = 112
    n_, g_, xo, xe, ze, tr, hno, sw, sr = [L + i for i in range(9)]
    a(f"""
    v_and_b32 v{n_}, 7, v0
    v_lshrrev_b32 v{g_}, 3, v0
    s_lshl_b32 s17, s39, 3
    v_add_u32 v{xo}, s17, v{n_}
    s_movk_i32 s18, 1152
    v_mul_u32_u24 v{xo}, s18, v{xo}
    s_lshl_b32 s17, s3, 4
    s_add_u32 s17, s17, 1024
    v_add_u32 v{xe}, s17, v{xo}
    v_lshl_add_u32 v{xe}, v{g_}, 1, v{xe}
    v_lshl_add_u32 v{xo}, v{g_}, 4, v{xo}
    s_lshl_b32 s17, s3, 7
    v_add_u32 v{xo}, s17, v{xo}
    v_lshlrev_b32 v8, 4, v0
    s_mul_i32 s36, s39, 9216
    s_lshl_b32 s17, s3, 10
    s_add_u32 s37, s36, s17
    s_add_u32 s38, s17, {LN_Z}
    s_lshl_b32 s17, s3, 7
    s_add_u32 s36, s36, s17
    s_add_u32 s36, s36, 8192
    v_lshlrev_b32 v{ze}, 1, v0
    s_waitcnt lgkmcnt(0)
    """)
    srd(a, 20, 8, G.SZ_X)
    srd(a, 28, 10, G.SZ_ZB, G.WS_ZB)
    XR, XER, ZER = 124, 128, 129
    a(f"""
    buffer_load_dwordx4 v[{XR}:{XR+3}], v{xo}, s[20:23], 0 offen
    buffer_load_ushort v{XER}, v{xe}, s[20:23], 0 offen
    s_mov_b32 m0, s38
    buffer_load_dwordx4 v8, s[28:31], s37 offen lds
    buffer_load_ushort v{ZER}, v{ze}, s[28:31], s36 offen
    """)
    vm = SB(a, 'vmcnt', 63)
    lg = SB(a, 'lgkmcnt', 14)
    vm.issue('x', 2); vm.issue('z', 2)
    a(f"""
    s_and_b32 s14, s3, 3
    s_mul_i32 s15, s14, 5
    s_cmp_eq_u32 s14, 3
    s_cselect_b32 s15, 14, s15
    s_lshl_b32 s17, s15, 6
    s_movk_i32 s18, 9216
    """)
    for i in range(5):
        a(f"v_add_u32 v11, s17, v0")
        if i: a(f"v_add_u32 v11, {64*i}, v11")
        a(f"v_mul_u32_u24 v12, 3641, v11")
        a(f"v_lshrrev_b32 v12, 16, v12")
        a(f"v_mul_u32_u24 v13, 18, v12")
        a(f"v_sub_u32 v13, v11, v13")
        a(f"v_mul_u32_u24 v12, s18, v12")
        a(f"v_lshl_add_u32 v{1+i}, v13, 4, v12")
        if 0 < i < 4: a(f"v_subrev_u32 v{1+i}, {1024*i}, v{1+i}")
    a(f"""
    s_cmp_ge_u32 s14, 2
    s_cselect_b32 s19, 1, 0
    v_mov_b32 v11, 0x7f000000
    s_cselect_b64 vcc, -1, 0
    v_cndmask_b32 v5, v5, v11, vcc
    s_mul_i32 s32, s12, 288
    s_mul_i32 s33, s13, {36*1024}
    s_cmp_ge_u32 s3, 4
    s_cselect_b32 s4, s6, s4
    s_cselect_b32 s5, s7, s5
    s_cselect_b32 s16, {UPOFF}, 0
    s_lshl_b32 s17, s15, 10
    s_add_u32 s16, s16, s17
    s_add_u32 s35, s16, 4096
    s_mov_b32 s6, {G.SZ_W}
    s_mov_b32 s7, 0x00020000
    """)
    WSRD = "s[4:7]"
    srd(a, 24, 10, G.SZ_HN, G.WS_HN)
    srd(a, 48, 10, G.SZ_H, G.WS_H)
    srd(a, 52, 10, SZ_FLAG, WS_FLAG)
    issued_d = {}
    issued_t = set()
    def dma(st, p):
        slot = (st % 4) * STG
        if p == 0:
            a(f"s_add_u32 m0, s16, {slot}")
            a(f"buffer_load_dwordx4 v1, {WSRD}, s32 offen lds")
        elif p < 4:
            a(f"buffer_load_dwordx4 v{1+p}, {WSRD}, s32 offen offset:{1024*p} lds")
        else:
            a(f"s_add_u32 s34, s35, {slot}")
            a("s_cmp_eq_u32 s19, 1")
            a(f"s_cselect_b32 m0, {K4_SCR}, s34")
            a(f"buffer_load_dwordx4 v5, {WSRD}, s32 offen lds")
            a(f"s_add_u32 s32, s32, {64*9216}")
        vm.issue(('D', st)); issued_d[st] = issued_d.get(st, 0) + 1
    def tokreg(kap):
        r = TOK + 4 * (kap % NTOK)
        return f"v[{r}:{r+3}]"
    def tokload(kap):
        a(f"buffer_load_dwordx4 {tokreg(kap)}, v8, s[24:27], s33 offen offset:{1024*(kap%4)} {LDF}")
        if kap % 4 == 3: a("s_add_u32 s33, s33, 4096")
        vm.issue(('T', kap)); issued_t.add(kap)
    a(f"""
    s_lshl_b32 s17, s43, 2
    s_add_u32 s17, s17, s14
    s_mul_i32 s17, s17, 30
    v_add_u32 v11, s17, v0
    v_mul_u32_u24 v12, 21846, v11
    v_lshrrev_b32 v12, 16, v12
    v_mul_u32_u24 v13, 3, v12
    v_sub_u32 v13, v11, v13
    s_movk_i32 s18, 9216
    v_mul_u32_u24 v12, s18, v12
    v_lshl_add_u32 v14, v13, 7, v12
    s_mul_i32 s34, s12, 288
    s_add_u32 s34, s34, {256*9216}
    s_mov_b64 exec, 0x3fffffff
    buffer_load_dword v15, v14, {WSRD}, s34 offen
    s_mov_b64 exec, -1
    """)
    vm.issue('pf')
    for st in range(FD):
        for p in range(5): dma(st, p)
    a(f"""
    v_lshrrev_b32 v{tr}, 4, v0
    v_lshlrev_b32 v{tr}, 8, v{tr}
    v_bfe_u32 v12, v0, 1, 1
    v_lshl_add_u32 v{tr}, v12, 7, v{tr}
    v_bfe_u32 v12, v0, 2, 2
    v_lshl_add_u32 v{tr}, v12, 4, v{tr}
    v_and_b32 v12, 1, v0
    v_lshl_add_u32 v{tr}, v12, 3, v{tr}
    v_add_u32 v{tr}, s38, v{tr}
    s_lshr_b32 s36, s39, 2
    s_mul_i32 s36, s36, {36*1024}
    s_and_b32 s17, s39, 3
    s_lshl_b32 s17, s17, 7
    s_add_u32 s36, s36, s17
    s_lshl_b32 s17, s3, 12
    s_add_u32 s37, s36, s17
    v_lshrrev_b32 v{hno}, 1, v{g_}
    v_lshlrev_b32 v{hno}, 10, v{hno}
    v_and_b32 v13, 1, v{g_}
    v_lshl_add_u32 v{hno}, v13, 9, v{hno}
    v_lshl_add_u32 v{hno}, v{n_}, 4, v{hno}
    v_lshlrev_b32 v{sr}, 6, v{n_}
    v_add_u32 v{sr}, {LN_S}, v{sr}
    s_lshl_b32 s17, s3, 3
    v_add_u32 v{sw}, s17, v{sr}
    s_mov_b32 s56, 0xffff0000
    s_mov_b32 s57, {f32(1.0/576)}
    s_mov_b32 s42, {f32(1e-5)}
    """)
    X = 132
    Hh = 144
    t0 = 156
    MU, RS = 160, 161
    R = 164
    vm.need({'x'})
    G.stamp(a, 1)
    for j in range(4):
        a(f"v_lshlrev_b32 v{X+2*j}, 16, v{XR+j}")
        a(f"v_and_b32 v{X+2*j+1}, s56, v{XR+j}")
    a(f"v_lshlrev_b32 v{X+8}, 16, v{XER}")
    def stats(src, ldsoff):
        s1, s2, c1, c2 = t0, t0 + 1, t0 + 2, t0 + 3
        a(f"v_add_f32 v{s1}, v{src}, v{src+1}")
        a(f"v_mul_f32 v{s2}, v{src}, v{src}")
        a(f"v_fmac_f32 v{s2}, v{src+1}, v{src+1}")
        for j in range(2, 9):
            a(f"v_add_f32 v{s1}, v{s1}, v{src+j}")
            a(f"v_fmac_f32 v{s2}, v{src+j}, v{src+j}")
        a(f"v_add_f32_dpp v{s1}, v{s1}, v{s1} row_ror:8 row_mask:0xf bank_mask:0xf")
        a(f"v_add_f32_dpp v{s2}, v{s2}, v{s2} row_ror:8 row_mask:0xf bank_mask:0xf")
        for sw_ in ('v_permlane16_swap_b32', 'v_permlane32_swap_b32'):
            a(f"v_mov_b32 v{c1}, v{s1}")
            a(f"v_mov_b32 v{c2}, v{s2}")
            a(f"{sw_} v{s1}, v{c1}")
            a(f"{sw_} v{s2}, v{c2}")
            a(f"v_add_f32 v{s1}, v{s1}, v{c1}")
            a(f"v_add_f32 v{s2}, v{s2}, v{c2}")
        a("s_mov_b64 exec, 0xff")
        a(f"ds_write_b64 v{sw}, v[{s1}:{s2}] offset:{ldsoff}")
        a("s_mov_b64 exec, -1")
        a("s_waitcnt lgkmcnt(0)")
        a("s_barrier")
        for j in range(4):
            a(f"ds_read_b128 v[{R+4*j}:{R+4*j+3}], v{sr} offset:{ldsoff+16*j}")
        a("s_waitcnt lgkmcnt(0)")
        for j in range(4):
            a(f"v_pk_add_f32 v[{R+4*j}:{R+4*j+1}], v[{R+4*j}:{R+4*j+1}], v[{R+4*j+2}:{R+4*j+3}]")
        a(f"v_pk_add_f32 v[{R}:{R+1}], v[{R}:{R+1}], v[{R+4}:{R+5}]")
        a(f"v_pk_add_f32 v[{R+8}:{R+9}], v[{R+8}:{R+9}], v[{R+12}:{R+13}]")
        a(f"v_pk_add_f32 v[{R}:{R+1}], v[{R}:{R+1}], v[{R+8}:{R+9}]")
        a(f"v_mul_f32 v{MU}, s57, v{R}")
        a(f"v_mul_f32 v{RS}, s57, v{R+1}")
        a(f"v_fma_f32 v{RS}, -v{MU}, v{MU}, v{RS}")
        a(f"v_max_f32 v{RS}, 0, v{RS}")
        a(f"v_cvt_pk_bf16_f32 v{c1}, v{MU}, v{RS}")
        a(f"v_lshlrev_b32 v{MU}, 16, v{c1}")
        a(f"v_and_b32 v{RS}, s56, v{c1}")
        a(f"v_add_f32 v{RS}, s42, v{RS}")
        a(f"v_cvt_pk_bf16_f32 v{RS}, v{RS}, v{RS}")
        a(f"v_and_b32 v{RS}, s56, v{RS}")
        a(f"v_sqrt_f32 v{RS}, v{RS}")
        a(f"v_cvt_pk_bf16_f32 v{RS}, v{RS}, v{RS}")
        a(f"v_and_b32 v{RS}, s56, v{RS}")
        a(f"v_rcp_f32 v{RS}, v{RS}")
    stats(X, 0)
    vm.need({'z'})
    ZR = 180
    a(f"ds_read_b64_tr_b16 v[{ZR}:{ZR+1}], v{tr}")
    a(f"ds_read_b64_tr_b16 v[{ZR+2}:{ZR+3}], v{tr} offset:64")
    for j in range(9): a(f"v_sub_f32 v{Hh+j}, v{X+j}, v{MU}")
    for j in range(9): a(f"v_mul_f32 v{Hh+j}, v{Hh+j}, v{RS}")
    a("s_waitcnt lgkmcnt(0)")
    for j in range(4):
        a(f"v_lshlrev_b32 v{R+2*j}, 16, v{ZR+j}")
        a(f"v_and_b32 v{R+2*j+1}, s56, v{ZR+j}")
    a(f"v_lshlrev_b32 v{R+8}, 16, v{ZER}")
    for j in range(9): a(f"v_fma_f32 v{Hh+j}, v{Hh+j}, v{R+j}, v{X+j}")
    for j in range(4): a(f"v_cvt_pk_bf16_f32 v{XR+j}, v{Hh+2*j}, v{Hh+2*j+1}")
    a(f"v_cvt_pk_bf16_f32 v{XER}, v{Hh+8}, v{Hh+8}")
    a(f"buffer_store_dwordx4 v[{XR}:{XR+3}], v{xo}, s[48:51], 0 offen sc1")
    vm.issue('st')
    ex = 121
    a(f"""
    v_lshlrev_b32 v{ex}, 4, v{n_}
    v_lshl_add_u32 v{ex}, v{g_}, 1, v{ex}
    s_lshl_b32 s17, s3, 8
    s_add_u32 s17, s17, {LN_X}
    v_add_u32 v{ex}, s17, v{ex}
    ds_write_b16 v{ex}, v{XER}
    """)
    for j in range(4):
        a(f"v_lshlrev_b32 v{X+2*j}, 16, v{XR+j}")
        a(f"v_and_b32 v{X+2*j+1}, s56, v{XR+j}")
    a(f"v_lshlrev_b32 v{X+8}, 16, v{XER}")
    stats(X, 640)
    for j in range(9): a(f"v_sub_f32 v{Hh+j}, v{X+j}, v{MU}")
    for j in range(9): a(f"v_mul_f32 v{Hh+j}, v{Hh+j}, v{RS}")
    for j in range(4): a(f"v_cvt_pk_bf16_f32 v{ZR+j}, v{Hh+2*j}, v{Hh+2*j+1}")
    a(f"v_cvt_pk_bf16_f32 v{ZER}, v{Hh+8}, v{Hh+8}")
    a(f"ds_write_b16 v{ex}, v{ZER} offset:128")
    a(f"buffer_store_dwordx4 v[{ZR}:{ZR+3}], v{hno}, s[24:27], s37 offen sc1")
    vm.issue('st')
    a(f"""
    v_add_u32 v{ex}, s17, v8
    s_waitcnt lgkmcnt(0)
    ds_read_b128 v[{R}:{R+3}], v{ex}
    ds_read_b128 v[{R+4}:{R+7}], v{ex} offset:128
    s_lshr_b32 s17, s3, 1
    s_add_u32 s17, s17, 32
    s_lshl_b32 s17, s17, 10
    s_and_b32 s18, s3, 1
    s_lshl_b32 s18, s18, 9
    s_add_u32 s17, s17, s18
    s_add_u32 s36, s36, s17
    s_waitcnt lgkmcnt(0)
    s_mov_b64 exec, 0xff
    buffer_store_dwordx4 v[{R+4}:{R+7}], v8, s[24:27], s36 offen sc1
    buffer_store_dwordx4 v[{R}:{R+3}], v{xe}, s[48:51], 0 offen sc1
    s_mov_b64 exec, -1
    """)
    vm.issue('st', 2)
    G.stamp_nw(a, 2)
    srd(a, 28, 10, G.SZ_HH, G.WS_HH)
    a(f"""
    v_bfe_u32 v11, v0, 1, 1
    s_movk_i32 s17, {UPOFF}
    v_mul_u32_u24 v6, s17, v11
    v_lshrrev_b32 v11, 5, v0
    v_bfe_u32 v12, v0, 2, 2
    v_lshl_add_u32 v11, v11, 3, v12
    v_mul_u32_u24 v11, 288, v11
    v_add_u32 v6, v6, v11
    v_and_b32 v11, 1, v0
    v_lshl_add_u32 v6, v11, 4, v6
    v_bfe_u32 v11, v0, 4, 1
    v_lshl_add_u32 v6, v11, 3, v6
    v_add_u32 v7, {2*STG}, v6
    v_bfe_u32 v11, v0, 4, 1
    s_mov_b32 s17, 147456
    v_mul_lo_u32 v9, s17, v11
    v_lshrrev_b32 v11, 5, v0
    v_lshl_add_u32 v9, v11, 8, v9
    v_and_b32 v11, 15, v0
    v_lshl_add_u32 v9, v11, 4, v9
    s_mul_i32 s37, s13, 294912
    s_mul_i32 s17, s12, 4608
    s_add_u32 s37, s37, s17
    v_mov_b32 v10, {f32(-2*math.log2(math.e)*math.sqrt(2/math.pi)*0.044715)}
    s_lshl_b32 s39, s43, 7
    s_add_u32 s39, s39, {FL_LN}
    v_mov_b32 v12, 0
    v_mov_b32 v13, 1
    """)
    vm.need({'st'})
    a("s_barrier")
    G.stamp_nw(a, 8)
    a("s_cmp_lg_u32 s3, 0")
    a("s_cbranch_scc1 KB_nosig")
    a("s_mov_b64 exec, 1")
    a("buffer_atomic_add v13, v12, s[52:55], s39 offen sc1")
    a("s_mov_b64 exec, -1")
    a.label('KB_nosig')
    for st in range(FD, 4):
        for p in range(5): dma(st, p)
    a("s_cmp_lg_u32 s3, 0")
    a("s_cbranch_scc1 KB_nopoll")
    poll(a, 'KB_ln', 12, 's39', 32, 13, 's[52:55]')
    a.label('KB_nopoll')
    vm.need({('D', 1)})
    a("s_barrier")
    G.stamp_nw(a, 19)
    for kap in range(8): tokload(kap)
    if PRIO == '1':
        a("s_cmp_ge_u32 s3, 4")
        a("s_cbranch_scc1 K4_np")
        a("s_setprio 1")
        a.label('K4_np')
    seq = [(t, kap) for kap in range(4 * KM) for t in range(9)]
    k0 = 4 * KM
    ND = int(os.environ.get('ND', '3' if KM == 5 else '1'))
    for t in range(ND): seq += [(t, kap) for kap in range(k0, 32)]
    for t in range(ND): seq += [(t, kap) for kap in range(32, 36)]
    for t in range(ND, 9): seq += [(t, kap) for kap in range(k0, 36)]
    nK = 36 * KM
    first_rd = {}
    for i, (t, kap) in enumerate(seq): first_rd.setdefault(kap // 4, i)
    last_tok = {}
    for i, (t, kap) in enumerate(seq): last_tok[kap] = i
    events = {}; pre = {}
    def after(i, f): events.setdefault(i, []).append(f)
    def before(i, f): pre.setdefault(i, []).append(f)
    visible = {0, 1}
    def bar(stages):
        def f():
            for s in stages: assert issued_d.get(s, 0) == 5, (s, issued_d)
            vm.need({('D', s) for s in stages})
            a("s_barrier")
            visible.update(stages)
        return f
    before(36 + 1, bar([2]))
    before(72 + 1, bar([3]))
    before(108 + 1, bar([4]))
    before(144 + 1, bar([5]))
    if KM == 5:
        before(nK + 1, bar([6, 7]))
    elif KM == 6:
        before(180 + 1, bar([6]))
        before(nK - 6, bar([7]))
    YB = int(os.environ.get('YB', '6'))
    before(first_rd[8] - YB, lambda: G.stamp_nw(a, 18))
    before(first_rd[8] - YB, bar([8]))
    before(first_rd[8] - YB, lambda: G.stamp_nw(a, 4))
    vq = []
    for st in range(4, 9):
        for p in range(5): vq.append((36 * (st - 3) + 1, ('D', st, p)))
    tq = [(0 if kap < NTOK else last_tok[kap - NTOK], ('T', kap)) for kap in range(8, 36)]
    def deadline(x):
        return first_rd[x[1]] - 40 if x[0] == 'D' else min(i for i, (t, k) in enumerate(seq) if k == x[1])
    dlist = sorted(vq, key=lambda ex: ex[1]); tlist = sorted(tq, key=lambda ex: ex[1])
    i = 0
    SP0 = int(os.environ.get('SP0', '2')); SP1 = int(os.environ.get('SP1', '3'))
    while dlist or tlist:
        cand = []
        if dlist and dlist[0][0] <= i: cand.append((deadline(dlist[0][1]), 'D'))
        if tlist and tlist[0][0] <= i: cand.append((deadline(tlist[0][1]), 'T'))
        if cand:
            w = min(cand)[1]
            ex_ = (dlist if w == 'D' else tlist).pop(0)
            x = ex_[1]
            if w == 'D': after(i, lambda x=x: dma(x[1], x[2]))
            else: after(i, lambda x=x: tokload(x[1]))
            i += SP0 if i >= nK else SP1
        else:
            i += 1
    def wd():
        a(f"""
        s_lshl_b32 s42, s2, 3
        s_add_u32 s42, s42, s3
        s_mul_i32 s42, s42, 2592
        v_lshlrev_b32 v11, 3, v8
        s_mov_b64 exec, 0x1fffff
        buffer_load_dword v11, v11, s[20:23], s42 offen
        s_mov_b64 exec, -1
        """)
        vm.issue('pf')
    srd(a, 20, 44, G.SZ_W)
    after(100, wd)
    def taddr(t, kap):
        st = kap // 4; slot = st % 4
        base = 'v6' if slot < 2 else 'v7'
        return base, (slot & 1) * STG + 16 * (kap % 4) * 288 + 32 * t
    free = [AF + 4 * i for i in range(NAF)]
    assign = {}
    nissued = 0
    def issue_upto(n, cap=99):
        nonlocal nissued
        cnt = 0
        while nissued < min(n, len(seq)) and free and (seq[nissued][1] // 4) in visible and cnt < cap:
            r = free.pop(0); assign[nissued] = r
            base, off = taddr(*seq[nissued])
            a(f"ds_read_b64_tr_b16 v[{r}:{r+1}], {base} offset:{off}")
            a(f"ds_read_b64_tr_b16 v[{r+2}:{r+3}], {base} offset:{off+4*288}")
            lg.issue(('F', nissued), 2)
            nissued += 1; cnt += 1
    issue_upto(PF)
    done_tiles = 0
    for i, (t, kap) in enumerate(seq):
        if i == 1: G.stamp_nw(a, 20)
        if i == nK: G.stamp_nw(a, 3)
        for f in pre.get(i, []): f()
        issue_upto(i + 1)
        assert i in assign, (i, t, kap)
        assert kap in issued_t
        vm.need({('T', kap)})
        lg.need({('F', i)})
        r = assign[i]
        last = (kap == 35)
        dst = f"v[{DS_}:{DS_+15}]" if last else f"v[{ACC+16*t}:{ACC+16*t+15}]"
        cin = "0" if kap == 0 else f"v[{ACC+16*t}:{ACC+16*t+15}]"
        a(f"v_mfma_f32_32x32x16_bf16 {dst}, v[{r}:{r+3}], {tokreg(kap)}, {cin}")
        issue_upto(i + 1 + (PF if i < nK else TPF), cap=(2 if not last else 6))
        free.append(r)
        for f in events.get(i, []): f()
        if last:
            a("s_call_b64 s[40:41], K4_epi")
            vm.issue('st')
            G.stamp_nw(a, 9 + done_tiles); done_tiles += 1
            if 1 <= t <= 3:
                free += [ACC + 16 * t + 4 * q for q in range(4)]
    G.stamp(a, 5)
    if FUSE2:
        import gen_kb2
        gen_kb2.emit(a)
    else:
        if G.STAMPS: a("s_waitcnt vmcnt(0)")
        G.stamp(a, 5)
        G.stamp_rt(a, 7)
        G.stamp_store(a, 21, 3, 3, 10, 8)
    a("s_endpgm")
    a.label('K4_epi')
    a("s_nop 10")
    c1 = f32(-2 * math.log2(math.e) * math.sqrt(2 / math.pi))
    gr = [DS_ + 0, DS_ + 1, DS_ + 2, DS_ + 3, DS_ + 8, DS_ + 9, DS_ + 10, DS_ + 11]
    ur = [x + 4 for x in gr]
    T = 12
    for e in range(8): a(f"v_mul_f32 v{T+e}, v{gr[e]}, v{gr[e]}")
    for e in range(8): a(f"v_fmaak_f32 v{T+e}, v10, v{T+e}, {c1}")
    for e in range(8): a(f"v_mul_f32 v{T+e}, v{T+e}, v{gr[e]}")
    for e in range(8):
        a(f"v_exp_f32 v{T+e}, v{T+e}")
        a(f"v_mul_f32 v{ur[e]}, v{gr[e]}, v{ur[e]}")
    for e in range(8): a(f"v_add_f32 v{T+e}, 1.0, v{T+e}")
    for e in range(8): a(f"v_rcp_f32 v{T+e}, v{T+e}")
    for e in range(8): a(f"v_mul_f32 v{T+e}, v{T+e}, v{ur[e]}")
    for e in range(4): a(f"v_cvt_pk_bf16_f32 v{20+e}, v{T+2*e}, v{T+2*e+1}")
    a(f"buffer_store_dwordx4 v[20:23], v9, s[28:31], s37 offen sc1")
    a("s_add_u32 s37, s37, 512")
    a("s_setpc_b64 s[40:41]")
    a.label('KB_done')
    a("s_endpgm")
    return a.finish() + kd('mlp_kernel', 256, 60, 256)

def launches():
    return {'kb': f"; @launch kernel=mlp_kernel grid=(256,1,1) block=(512,1,1) lds={KB_LDS}"}
def fns():
    return dict(kb=kb)
```

```python
import gen as G
from gen import KA, srd, f32
from gen_gemm import SB, WS_PART, SZ_PART, WS_FLAG, S5, S5W
import gen_kb as KB
import os
XF = KB.XF
LDF = KB.LDF
K6_SCR = 4 * S5

def emit(a):
    ACC, HF, WF = 64, 24, 124
    a("s_setprio 0")
    a(f"""
    s_and_b32 s32, s2, 7
    s_lshr_b32 s13, s2, 3
    s_mul_i32 s14, s32, 29
    s_min_u32 s15, s32, 2
    s_add_u32 s14, s14, s15
    s_add_u32 s14, s14, s13
    s_mul_i32 s17, s14, 841
    s_lshr_b32 s17, s17, 16
    s_mul_i32 s15, s17, 78
    s_sub_u32 s18, s14, s15
    s_mul_i32 s15, s18, 21846
    s_lshr_b32 s15, s15, 16
    s_mul_i32 s16, s15, 3
    s_sub_u32 s16, s18, s16
    s_and_b32 s13, s3, 3
    """)
    a(f"""
    s_mul_i32 s36, s12, 144
    s_mul_i32 s37, s36, 43691
    s_lshr_b32 s37, s37, 26
    s_add_u32 s36, s36, 143
    s_mul_i32 s36, s36, 43691
    s_lshr_b32 s36, s36, 26
    s_mul_i32 s38, s43, 3
    s_add_u32 s37, s37, s38
    s_add_u32 s36, s36, s38
    s_lshl_b32 s37, s37, 7
    s_lshl_b32 s36, s36, 7
    s_add_u32 s37, s37, {KB.FL_HH}
    s_add_u32 s36, s36, {KB.FL_HH}
    v_mov_b32 v12, 0
    v_mov_b32 v13, 1
    s_cmp_ge_u32 s3, 4
    s_cbranch_scc1 G2_lsetup
    """)
    a(f"""
    v_lshrrev_b32 v10, 4, v0
    v_bfe_u32 v11, v0, 2, 2
    v_lshl_add_u32 v10, v10, 3, v11
    v_mul_u32_u24 v10, 384, v10
    v_and_b32 v11, 3, v0
    v_lshl_add_u32 v10, v11, 3, v10
    v_bfe_u32 v11, v0, 3, 2
    v_lshlrev_b32 v11, 5, v11
    s_mul_i32 s39, s13, 96
    """)
    for dt in range(3):
        a(f"s_add_u32 s38, s39, {32*dt}")
        a("v_xor_b32 v14, s38, v11")
        a(f"v_add_u32 v{16+dt}, v10, v14")
        a(f"v_add_u32 v{148+dt}, {2*S5}, v{16+dt}")
    a(f"v_lshlrev_b32 v19, 4, v0")
    a(f"v_add_u32 v19, {S5W}, v19")
    a(f"v_add_u32 v151, {2*S5}, v19")
    for i in range(60): a(f"v_mov_b32 v{ACC+i}, 0")
    a("s_branch G2_sync")
    a.label('G2_lsetup')
    a(f"""
    s_mul_i32 s19, s13, 384
    s_movk_i32 s38, 1152
    """)
    for p in range(6):
        a(f"v_add_u32 v10, s19, v0")
        if p: a(f"v_add_u32 v10, {64*p}, v10")
        a("v_mul_u32_u24 v11, 2731, v10")
        a("v_lshrrev_b32 v11, 16, v11")
        a("v_mul_u32_u24 v15, 24, v11")
        a("v_sub_u32 v15, v10, v15")
        a("v_bfe_u32 v16, v11, 1, 1")
        a("v_bfe_u32 v14, v11, 3, 1")
        a("v_lshl_or_b32 v16, v14, 1, v16")
        a("v_lshlrev_b32 v16, 1, v16")
        a("v_xor_b32 v15, v15, v16")
        a("v_mul_u32_u24 v11, s38, v11")
        a(f"v_lshl_add_u32 v{1+p}, v15, 4, v11")
        if p % 3: a(f"v_subrev_u32 v{1+p}, {1024*(p%3)}, v{1+p}")
    a(f"""
    s_mul_i32 s19, s13, 3
    s_cmp_eq_u32 s13, 3
    s_cselect_b32 s19, 8, s19
    v_lshlrev_b32 v10, 4, v0
    """)
    for p in range(3):
        a(f"s_add_u32 s39, s19, {p}")
        a("s_lshr_b32 s38, s39, 1")
        a("s_mul_i32 s38, s38, 147456")
        a("s_and_b32 s39, s39, 1")
        a("s_lshl_b32 s39, s39, 10")
        a("s_add_u32 s38, s38, s39")
        if p == 1: a("s_sub_u32 s38, s38, 1024")
        if p == 2:
            a("s_cmp_ge_u32 s13, 2")
            a("s_cselect_b32 s38, 0x7f000000, s38")
        a(f"v_add_u32 v{7+p}, s38, v10")
    a(f"""
    s_cmp_ge_u32 s13, 2
    s_cselect_b32 s39, 1, 0
    s_mul_i32 s32, s17, {1536*1152}
    s_mul_i32 s38, s16, 384
    s_add_u32 s32, s32, s38
    s_mul_i32 s33, s15, {5*147456}
    s_mul_i32 s38, s17, {48*1024}
    s_add_u32 s33, s33, s38
    s_mul_i32 s34, s13, 6144
    s_lshl_b32 s35, s19, 10
    s_add_u32 s35, s35, {S5W}
    """)
    a.label('G2_sync')
    a("s_waitcnt vmcnt(0)")
    a("s_barrier")
    G.stamp_nw(a, 2)
    a("s_cmp_lg_u32 s3, 0")
    a("s_cbranch_scc1 G2_nosig")
    a("s_mov_b64 exec, 1")
    a("buffer_atomic_add v13, v12, s[52:55], s37 offen sc1")
    a("s_cmp_eq_u32 s36, s37")
    a("s_cbranch_scc1 G2_sig1")
    a("buffer_atomic_add v13, v12, s[52:55], s36 offen sc1")
    a.label('G2_sig1')
    a("s_mov_b64 exec, -1")
    a.label('G2_nosig')
    a("s_cmp_ge_u32 s2, 234")
    a("s_cbranch_scc1 G2_end")
    def wl(slot):
        L = []
        L.append([f"s_add_u32 m0, s34, {slot}", "buffer_load_dwordx4 v1, s[20:23], s32 offen lds"])
        L.append(["buffer_load_dwordx4 v2, s[20:23], s32 offen offset:1024 lds"])
        L.append(["buffer_load_dwordx4 v3, s[20:23], s32 offen offset:2048 lds"])
        L.append(["s_add_u32 m0, m0, 3072", "buffer_load_dwordx4 v4, s[20:23], s32 offen lds"])
        L.append(["buffer_load_dwordx4 v5, s[20:23], s32 offen offset:1024 lds"])
        L.append(["buffer_load_dwordx4 v6, s[20:23], s32 offen offset:2048 lds", f"s_add_u32 s32, s32, {64*1152}"])
        return L
    def hl(slot):
        L = []
        L.append([f"s_add_u32 m0, s35, {slot}", f"buffer_load_dwordx4 v7, s[28:31], s33 offen {LDF} lds"])
        L.append([f"buffer_load_dwordx4 v8, s[28:31], s33 offen offset:1024 {LDF} lds"])
        L.append(["s_add_u32 s38, m0, 2048", "s_cmp_eq_u32 s39, 1", f"s_cselect_b32 m0, {K6_SCR}, s38",
                  f"buffer_load_dwordx4 v9, s[28:31], s33 offen {LDF} lds", "s_add_u32 s33, s33, 2048"])
        return L
    def emitl(L):
        for grp in L:
            for l in grp: a(l)
    a("s_cmp_ge_u32 s3, 4")
    a("s_cbranch_scc1 G2_loader")
    a("s_cmp_lg_u32 s3, 0")
    a("s_cbranch_scc1 G2_nopoll")
    a(f"""
    s_mul_i32 s36, s15, 80
    s_lshr_b32 s37, s36, 8
    s_add_u32 s36, s36, 79
    s_lshr_b32 s36, s36, 8
    s_min_u32 s36, s36, 7
    s_mul_i32 s37, s37, 3
    s_mul_i32 s36, s36, 3
    s_add_u32 s37, s37, s17
    s_add_u32 s36, s36, s17
    s_lshl_b32 s37, s37, 7
    s_lshl_b32 s36, s36, 7
    s_add_u32 s37, s37, {KB.FL_HH}
    s_add_u32 s36, s36, {KB.FL_HH}
    s_cmp_eq_u32 s17, 1
    s_cselect_b32 s38, 12, 11
    """)
    KB.poll(a, 'G2_a', 12, 's37', 's38', 13, 's[52:55]')
    KB.poll(a, 'G2_b', 12, 's36', 's38', 13, 's[52:55]')
    a.label('G2_nopoll')
    a("s_barrier")
    G.stamp_nw(a, 1)
    a("s_mov_b32 s40, 0")
    a.label('G2_cloop')
    for sl in range(4):
        bo = 16 if sl < 2 else 148
        so = (sl & 1) * S5
        a("s_barrier")
        rd = []
        for ks in range(2):
            for dt in range(3):
                r = WF + 4 * (3 * ks + dt)
                rd.append((('W', ks, dt), [f"ds_read_b64_tr_b16 v[{r}:{r+1}], v{bo+dt} offset:{so + ks*32*384}",
                                           f"ds_read_b64_tr_b16 v[{r+2}:{r+3}], v{bo+dt} offset:{so + ks*32*384 + 4*384}"]))
            for tt in range(5):
                r = HF + 4 * (2 * tt + ks)
                rd.append((('H', ks, tt), [f"ds_read_b128 v[{r}:{r+3}], v{bo+3} offset:{so + (2*tt+ks)*1024}"]))
        lg = SB(a, 'lgkmcnt', 14)
        def issue_rd(n):
            for _ in range(n):
                if rd:
                    tag, ls = rd.pop(0)
                    for l in ls: a(l)
                    lg.issue(tag, len(ls))
        issue_rd(8)
        for ks in range(2):
            for tt in range(5):
                for dt in range(3):
                    lg.need({('W', ks, dt), ('H', ks, tt)})
                    c = ACC + 4 * (dt * 5 + tt)
                    rw = WF + 4 * (3 * ks + dt); rh = HF + 4 * (2 * tt + ks)
                    a(f"v_mfma_f32_16x16x32_bf16 v[{c}:{c+3}], v[{rw}:{rw+3}], v[{rh}:{rh+3}], v[{c}:{c+3}]")
                    issue_rd(1)
        assert not rd
    a("s_add_u32 s40, s40, 1")
    a("s_cmp_lt_u32 s40, 6")
    a("s_cbranch_scc1 G2_cloop")
    G.stamp_nw(a, 3)
    PB = 2560
    srd(a, 24, 10, SZ_PART, WS_PART)
    srd(a, 4, 46, G.SZ_X)
    a(f"""
    v_lshlrev_b32 v10, 4, v0
    v_lshlrev_b32 v9, 3, v0
    s_mul_i32 s36, s18, {3*4*2*PB}
    s_mul_i32 s37, s3, {2*PB}
    s_add_u32 s36, s36, s37
    """)
    for dt in range(3):
        a(f"s_cmp_eq_u32 s17, {dt}")
        a(f"s_cbranch_scc1 K6_skip{dt}")
        a(f"s_cmp_lt_u32 s17, {dt}")
        a("s_cselect_b32 s37, 0, 1")
        a("s_sub_u32 s37, s17, s37")
        a(f"s_mul_i32 s37, s37, {PB}")
        a(f"s_add_u32 s37, s37, {dt*4*2*PB}")
        a("s_add_u32 s37, s37, s36")
        o = 124 + 12 * (dt & 1)
        for tt in range(5):
            c = ACC + 4 * (dt * 5 + tt)
            a(f"v_cvt_pk_bf16_f32 v{o+2*tt}, v{c}, v{c+1}")
            a(f"v_cvt_pk_bf16_f32 v{o+2*tt+1}, v{c+2}, v{c+3}")
            if tt == 1: a(f"buffer_store_dwordx4 v[{o}:{o+3}], v10, s[24:27], s37 offen {XF}")
            if tt == 3: a(f"buffer_store_dwordx4 v[{o+4}:{o+7}], v10, s[24:27], s37 offen offset:1024 {XF}")
            if tt == 4: a(f"buffer_store_dwordx2 v[{o+8}:{o+9}], v9, s[24:27], s37 offen offset:2048 {XF}")
        a.label(f'K6_skip{dt}')
    for dt in range(3):
        a(f"s_cmp_lg_u32 s17, {dt}")
        a(f"s_cbranch_scc1 K6_mv{dt}")
        for i in range(20): a(f"v_mov_b32 v{24+i}, v{ACC+20*dt+i}")
        a.label(f'K6_mv{dt}')
    a(f"""
    v_and_b32 v11, 15, v0
    s_mul_i32 s37, s15, 80
    v_add_u32 v11, s37, v11
    s_movk_i32 s38, 1152
    v_mul_u32_u24 v11, s38, v11
    v_lshrrev_b32 v12, 4, v0
    v_lshl_add_u32 v11, v12, 3, v11
    s_mul_i32 s37, s16, 384
    s_mul_i32 s38, s3, 96
    s_add_u32 s37, s37, s38
    s_lshl_b32 s38, s17, 5
    s_add_u32 s37, s37, s38
    v_add_u32 v11, s37, v11
    s_lshl_b32 s41, s18, 2
    s_add_u32 s41, s41, s3
    s_lshl_b32 s41, s41, 6
    v_mov_b32 v12, 0
    v_mov_b32 v13, 1
    s_waitcnt vmcnt(0)
    s_mov_b64 exec, 1
    buffer_atomic_add v13, v12, s[52:55], s41 offen sc1
    s_mov_b64 exec, -1
    """)
    for tt in range(5):
        a(f"s_mov_b32 s37, {tt*16*1152}")
        a(f"buffer_load_dwordx2 v[{44+2*tt}:{45+2*tt}], v11, s[48:51], s37 offen {LDF}")
    G.stamp_nw(a, 4)
    KB.poll(a, 'G2_x', 12, 's41', 3, 13, 's[52:55]')
    G.stamp_nw(a, 8)
    a(f"""
    s_mul_i32 s37, s17, {4*2*PB}
    s_add_u32 s37, s37, s36
    s_add_u32 s38, s37, {PB}
    buffer_load_dwordx4 v[64:67], v10, s[24:27], s37 offen {XF}
    buffer_load_dwordx4 v[76:79], v10, s[24:27], s38 offen {XF}
    buffer_load_dwordx4 v[68:71], v10, s[24:27], s37 offen offset:1024 {XF}
    buffer_load_dwordx4 v[80:83], v10, s[24:27], s38 offen offset:1024 {XF}
    buffer_load_dwordx2 v[72:73], v9, s[24:27], s37 offen offset:2048 {XF}
    buffer_load_dwordx2 v[84:85], v9, s[24:27], s38 offen offset:2048 {XF}
    s_mov_b32 s38, 0xffff0000
    """)
    for tt in range(5):
        if tt in (0, 2, 4): a("s_waitcnt vmcnt(4)")
        c = 24 + 4 * tt; t0 = 88; h0 = 44 + 2 * tt
        for src in (64 + 2 * tt, 76 + 2 * tt):
            a(f"v_lshlrev_b32 v{t0}, 16, v{src}")
            a(f"v_and_b32 v{t0+1}, s38, v{src}")
            a(f"v_lshlrev_b32 v{t0+2}, 16, v{src+1}")
            a(f"v_and_b32 v{t0+3}, s38, v{src+1}")
            a(f"v_pk_add_f32 v[{c}:{c+1}], v[{c}:{c+1}], v[{t0}:{t0+1}]")
            a(f"v_pk_add_f32 v[{c+2}:{c+3}], v[{c+2}:{c+3}], v[{t0+2}:{t0+3}]")
        a(f"v_cvt_pk_bf16_f32 v14, v{c}, v{c+1}")
        a(f"v_cvt_pk_bf16_f32 v15, v{c+2}, v{c+3}")
        a(f"v_lshlrev_b32 v{c}, 16, v14")
        a(f"v_and_b32 v{c+1}, s38, v14")
        a(f"v_lshlrev_b32 v{c+2}, 16, v15")
        a(f"v_and_b32 v{c+3}, s38, v15")
        a(f"v_lshlrev_b32 v{t0}, 16, v{h0}")
        a(f"v_and_b32 v{t0+1}, s38, v{h0}")
        a(f"v_lshlrev_b32 v{t0+2}, 16, v{h0+1}")
        a(f"v_and_b32 v{t0+3}, s38, v{h0+1}")
        a(f"v_pk_add_f32 v[{c}:{c+1}], v[{c}:{c+1}], v[{t0}:{t0+1}]")
        a(f"v_pk_add_f32 v[{c+2}:{c+3}], v[{c+2}:{c+3}], v[{t0+2}:{t0+3}]")
        a(f"v_cvt_pk_bf16_f32 v{h0}, v{c}, v{c+1}")
        a(f"v_cvt_pk_bf16_f32 v{h0+1}, v{c+2}, v{c+3}")
        a(f"s_mov_b32 s37, {tt*16*1152}")
        a(f"buffer_store_dwordx2 v[{h0}:{h0+1}], v11, s[4:7], s37 offen")
    a("s_branch G2_end")
    a.label('G2_loader')
    for st in range(3): emitl(wl(st * S5))
    a("s_barrier")
    G.stamp_nw(a, 1)
    for st in range(3): emitl(hl(st * S5))
    a("s_waitcnt vmcnt(3)")
    a("s_mov_b32 s40, 0")
    a.label('G2_lloop')
    for sl in range(4):
        a("s_waitcnt vmcnt(18)")
        a("s_barrier")
        if sl == 1:
            a("s_cmp_eq_u32 s40, 5")
            a("s_cselect_b32 s32, 0x7f000000, s32")
            a("s_cselect_b32 s33, 0x7f000000, s33")
        emitl(wl(((sl + 3) % 4) * S5))
        emitl(hl(((sl + 3) % 4) * S5))
    a("s_add_u32 s40, s40, 1")
    a("s_cmp_lt_u32 s40, 6")
    a("s_cbranch_scc1 G2_lloop")
    a.label('G2_end')
    if G.STAMPS: a("s_waitcnt vmcnt(0)")
    G.stamp(a, 18)
    G.stamp_rt(a, 7)
    G.stamp_store(a, 21, 3, 3, 10, 8)
```

```python
import sys, struct
from asmlib import Asm, kd, khead

S, D, F = 2048, 576, 4608
KA = dict(q=0, k=8, v=16, shk=24, ssmk=32, ssmd=40, bx=48, wg=56, wu=64, wd=72, out=80, dbg=88, ws=96)
KVR_PITCH = 4736
WS_KVR = 0;            SZ_KVR = D * KVR_PITCH
WS_ZB = 0x400000;      SZ_ZB = S * D * 2
WS_H = 0x800000;       SZ_H = S * D * 2
WS_HN = 0xC00000;      SZ_HN = S * D * 2
WS_HH = 0x1000000;     SZ_HH = S * F * 2
SZ_X = S * D * 2
SZ_W = D * F * 2

import os
STAMPS = os.environ.get('STAMPS', '') != ''
ST1 = os.environ.get('ST1', 'nt')
ST2 = os.environ.get('ST2', '')
PREFETCH = os.environ.get('PREFETCH', '1') == '1'
WLANES = int(os.environ.get('WLANES', '32'))
CODEPF = os.environ.get('CODEPF', '1') == '1'
WS_ST = 0x4000000
def stamp(a, i):
    if not STAMPS: return
    a(f"s_memtime s[{60+2*i}:{61+2*i}]")
    a("s_waitcnt lgkmcnt(0)")
def stamp_nw(a, i):
    if not STAMPS: return
    a(f"s_memtime s[{60+2*i}:{61+2*i}]")
def stamp_rt(a, i):
    if not STAMPS: return
    a(f"s_memrealtime s[{60+2*i}:{61+2*i}]")
    a("s_waitcnt lgkmcnt(0)")
def stamp_store(a, n, kidx, wavesgpr, wsptr, nw):
    if not STAMPS: return
    a(f"s_add_u32 s52, s{wsptr}, {WS_ST + kidx*0x100000}")
    a(f"s_addc_u32 s53, s{wsptr+1}, 0")
    a("s_mov_b32 s54, 0x100000")
    a("s_mov_b32 s55, 0x00020000")
    a(f"s_mul_i32 s56, s2, {nw}")
    if wavesgpr is not None: a(f"s_add_u32 s56, s56, s{wavesgpr}")
    a("s_lshl_b32 s56, s56, 7")
    a("s_mov_b64 exec, 1")
    a("v_mov_b32 v0, 0")
    for i in range(n):
        a(f"v_mov_b32 v1, s{60+2*i}")
        a(f"buffer_store_dword v1, v0, s[52:55], s56 offen offset:{4*i}")
    a("s_waitcnt vmcnt(0)")

def f32(x):
    return '0x%08x' % struct.unpack('<I', struct.pack('<f', x))[0]

def srd(a, d, b, size, off=0):
    if off:
        a(f"s_add_u32 s{d}, s{b}, {off}")
        a(f"s_addc_u32 s{d+1}, s{b+1}, 0")
    else:
        a(f"s_mov_b32 s{d}, s{b}")
        a(f"s_mov_b32 s{d+1}, s{b+1}")
    a(f"s_mov_b32 s{d+2}, {size}")
    a(f"s_mov_b32 s{d+3}, 0x00020000")

def k1():
    a = Asm()
    a.raw(khead('prep_kernel'))
    a(f"""
    s_cmp_ge_u32 s2, 576
    s_cbranch_scc1 K1_done
    """)
    stamp_rt(a, 6)
    stamp(a, 0)
    if CODEPF:
        a("""
        s_cmp_ge_u32 s2, 32
        s_cbranch_scc1 K1_nocode
        s_getpc_b64 s[40:41]
        K1_pc:
        s_sub_u32 s40, s40, K1_pc-prep_kernel
        s_subb_u32 s41, s41, 0
        s_mov_b32 s42, TEXT_END-prep_kernel
        s_mov_b32 s43, 0x00020000
        s_lshr_b32 s3, s2, 3
        s_lshl_b32 s3, s3, 13
        v_lshlrev_b32 v1, 7, v0
        buffer_load_dword v159, v1, s[40:43], s3 offen
        K1_nocode:
        """)
    a(f"""
    s_load_dwordx4 s[4:7], s[0:1], {KA['k']}
    s_load_dwordx2 s[8:9], s[0:1], {KA['shk']}
    s_load_dwordx2 s[10:11], s[0:1], {KA['ws']}
    s_and_b32 s3, s2, 7
    s_mul_i32 s3, s3, 72
    s_lshr_b32 s12, s2, 3
    s_add_u32 s3, s3, s12
    s_lshr_b32 s12, s3, 6
    s_and_b32 s13, s3, 63
    v_and_b32 v1, 15, v0
    v_lshrrev_b32 v2, 4, v0
    s_lshl_b32 s14, s12, 6
    v_lshl_add_u32 v3, v1, 2, s14
    s_lshl_b32 s15, s13, 5
    v_lshl_add_u32 v4, v2, 3, s15
    s_movk_i32 s16, 1152
    v_mul_u32_u24 v5, s16, v4
    v_lshl_add_u32 v5, v3, 1, v5
    v_add_u32 v6, 4608, v5
    v_subrev_u32 v7, 3456, v5
    v_cmp_eq_u32 vcc, 0, v4
    v_mov_b32 v8, 0x80000000
    v_cndmask_b32 v7, v7, v8, vcc
    v_lshlrev_b32 v9, 3, v3
    s_waitcnt lgkmcnt(0)
    """)
    stamp(a, 1)
    srd(a, 20, 4, SZ_X)
    srd(a, 24, 6, SZ_X)
    srd(a, 28, 8, D * 8)
    srd(a, 32, 10, SZ_KVR, WS_KVR)
    KR = 16
    VR = 40
    WR = 56
    a(f"buffer_load_dwordx4 v[{WR}:{WR+3}], v9, s[28:31], 0 offen")
    a(f"buffer_load_dwordx4 v[{WR+4}:{WR+7}], v9, s[28:31], 0 offen offset:16")
    for r in range(11):
        vo, off = ('v7', r * 1152) if r < 3 else (('v5', (r - 3) * 1152) if r < 7 else ('v6', (r - 7) * 1152))
        a(f"buffer_load_dwordx2 v[{KR+2*r}:{KR+2*r+1}], {vo}, s[20:23], 0 offen offset:{off}")
    for r in range(8):
        vo, off = ('v5', r * 1152) if r < 4 else ('v6', (r - 4) * 1152)
        a(f"buffer_load_dwordx2 v[{VR+2*r}:{VR+2*r+1}], {vo}, s[24:27], 0 offen offset:{off}")
    a(f"""
    s_add_u32 s17, s14, s13
    s_mul_i32 s17, s17, {KVR_PITCH}
    v_lshlrev_b32 v10, 4, v0
    v_add_u32 v10, 4224, v10
    v_cmp_eq_u32 vcc, 32, v0
    v_mov_b32 v11, 112
    v_cndmask_b32 v10, v10, v11, vcc
    v_cmp_lt_u32 vcc, 32, v0
    v_cndmask_b32 v10, v10, v8, vcc
    v_mov_b32 v12, 0
    v_mov_b32 v13, 0
    v_mov_b32 v14, 0
    v_mov_b32 v15, 0
    buffer_store_dwordx4 v[12:15], v10, s[32:35], s17 offen
    s_add_u32 s36, s10, 0x3F00000
    s_addc_u32 s37, s11, 0
    s_mov_b32 s38, 0xA000
    s_mov_b32 s39, 0x00020000
    s_lshl_b32 s17, s2, 10
    v_lshlrev_b32 v10, 4, v0
    buffer_store_dwordx4 v[12:15], v10, s[36:39], s17 offen sc0 sc1
    """)
    a(f"""
    s_movk_i32 s16, {KVR_PITCH}
    v_mul_u32_u24 v10, s16, v3
    v_lshlrev_b32 v11, 1, v4
    v_sub_u32 v10, v10, v11
    v_add_u32 v10, 4208, v10
    v_add_u32 v11, {2*KVR_PITCH}, v10
    s_mov_b32 s18, 0xffff0000
    """)
    WF = 64
    a("s_waitcnt vmcnt(21)")
    for e in range(4):
        for t in range(4):
            src = WR + 2 * e + (t >> 1)
            dst = WF + ((e >> 1) * 4 + t) * 2 + (e & 1)
            if t & 1: a(f"v_and_b32 v{dst}, s18, v{src}")
            else: a(f"v_lshlrev_b32 v{dst}, 16, v{src}")
    KF = 80
    a("s_waitcnt vmcnt(10)")
    stamp(a, 2)
    for r in range(11):
        for p in range(2):
            src = KR + 2 * r + p
            a(f"v_lshlrev_b32 v{KF+4*r+2*p}, 16, v{src}")
            a(f"v_and_b32 v{KF+4*r+2*p+1}, s18, v{src}")
    AC = 16
    AC = 124
    for r in range(8):
        for p in range(2):
            d = AC + 4 * r + 2 * p
            kf = lambda rr: f"v[{KF+4*rr+2*p}:{KF+4*rr+2*p+1}]"
            wf = lambda t: f"v[{WF+(p*4+t)*2}:{WF+(p*4+t)*2+1}]"
            a(f"v_pk_mul_f32 v[{d}:{d+1}], {kf(r)}, {wf(3)}")
            a(f"v_pk_fma_f32 v[{d}:{d+1}], {kf(r+1)}, {wf(2)}, v[{d}:{d+1}]")
            a(f"v_pk_fma_f32 v[{d}:{d+1}], {kf(r+2)}, {wf(1)}, v[{d}:{d+1}]")
            a(f"v_pk_fma_f32 v[{d}:{d+1}], {kf(r+3)}, {wf(0)}, v[{d}:{d+1}]")
    a("s_waitcnt vmcnt(2)")
    stamp(a, 3)
    VF = 16
    for r in range(8):
        for p in range(2):
            src = VR + 2 * r + p
            t = VF + 2 * ((2 * r + p) % 8)
            d = AC + 4 * r + 2 * p
            a(f"v_lshlrev_b32 v{t}, 16, v{src}")
            a(f"v_and_b32 v{t+1}, s18, v{src}")
            a(f"v_pk_mul_f32 v[{d}:{d+1}], v[{d}:{d+1}], v[{t}:{t+1}]")
    OUT = 80
    for e in range(4):
        for j in range(4):
            a(f"v_cvt_pk_bf16_f32 v{OUT+4*e+j}, v{AC+4*(7-2*j)+e}, v{AC+4*(6-2*j)+e}")
        vo = 'v10' if e < 2 else 'v11'
        if e & 1:
            a(f"v_add_u32 {vo}, {KVR_PITCH}, {vo}")
        a(f"buffer_store_dwordx4 v[{OUT+4*e}:{OUT+4*e+3}], {vo}, s[32:35], 0 offen {ST1}")
    stamp(a, 4)
    if STAMPS: a("s_waitcnt vmcnt(0)")
    stamp(a, 5)
    stamp_rt(a, 7)
    stamp_store(a, 8, 0, None, 10, 1)
    a.label('K1_done')
    a("s_endpgm")
    return a.finish() + kd('prep_kernel', 160, 44, 160)

A_STRIDE = 4416
BB = 17664
B_STRIDE = 4640
K2_LDS = BB + B_STRIDE + 4608
def k2():
    a = Asm()
    a.raw(khead('conv_kernel'))
    a(f"""
    s_cmp_ge_u32 s2, 576
    s_cbranch_scc1 K2_done
    """)
    stamp_rt(a, 6)
    stamp(a, 0)
    a(f"""
    s_load_dwordx4 s[4:7], s[0:1], {KA['ssmk']}
    s_load_dwordx2 s[10:11], s[0:1], {KA['ws']}
    s_load_dwordx2 s[8:9], s[0:1], {KA['q']}
    s_load_dwordx4 s[36:39], s[0:1], {KA['wg']}
    s_and_b32 s3, s2, 7
    s_mul_i32 s3, s3, 72
    s_lshr_b32 s12, s2, 3
    s_add_u32 s3, s3, s12
    v_lshlrev_b32 v1, 4, v0
    v_mov_b32 v2, 0
    s_lshl_b32 s13, s3, 12
    s_mul_i32 s14, s3, {KVR_PITCH}
    s_lshl_b32 s15, s3, 1
    s_waitcnt lgkmcnt(0)
    """)
    srd(a, 20, 4, SZ_X)
    srd(a, 24, 6, D * 2)
    srd(a, 28, 10, SZ_KVR, WS_KVR)
    srd(a, 32, 10, SZ_ZB, WS_ZB)
    for b in range(2):
        a(f"s_add_u32 s16, s14, {128 - 8*b}")
        a(f"s_mov_b32 m0, {BB + b*B_STRIDE}")
        for i in range(4):
            a(f"buffer_load_dwordx4 v1, s[28:31], s16 offen offset:{i*1024} lds")
        a(f"s_add_u32 s16, s16, 4096")
        a(f"s_mov_b32 m0, {BB + b*B_STRIDE + 4096}")
        a("s_mov_b64 exec, 0xffffffff")
        a(f"buffer_load_dwordx4 v1, s[28:31], s16 offen lds")
        a("s_mov_b64 exec, -1")
    a("buffer_load_dwordx2 v[4:5], v2, s[20:23], s13 offen")
    a("buffer_load_ushort v6, v2, s[24:27], s15 offen")
    for r in range(4):
        a(f"s_add_u32 s16, s13, {2*(r+1)}")
        a(f"s_mov_b32 m0, {r*A_STRIDE + 64}")
        for i in range(4):
            a(f"buffer_load_dwordx4 v1, s[20:23], s16 offen offset:{i*1024} lds")
    a(f"""
    v_lshrrev_b32 v7, 3, v0
    s_movk_i32 s16, {A_STRIDE}
    v_mul_u32_u24 v7, s16, v7
    v_and_b32 v8, 7, v0
    v_lshlrev_b32 v9, 4, v8
    v_add_u32 v10, {4160-64}, v9
    v_cmp_gt_u32 vcc, 4, v8
    v_cndmask_b32 v9, v10, v9, vcc
    v_add_u32 v7, v7, v9
    v_mov_b32 v12, 0
    v_mov_b32 v13, 0
    v_mov_b32 v14, 0
    v_mov_b32 v15, 0
    s_mov_b64 exec, 0xffffffff
    ds_write_b128 v7, v[12:15]
    s_mov_b64 exec, -1
    """)
    a(f"""
    v_and_b32 v7, 3, v0
    v_mul_u32_u24 v7, s16, v7
    v_bfe_u32 v8, v0, 2, 2
    v_lshrrev_b32 v9, 4, v0
    v_add_u32 v8, v8, v9
    v_lshl_add_u32 v7, v8, 4, v7
    """)
    a(f"""
    v_and_b32 v10, 1, v0
    v_bfe_u32 v11, v0, 1, 3
    s_movk_i32 s17, {B_STRIDE}
    v_mul_u32_u24 v8, s17, v10
    v_lshl_add_u32 v8, v9, 4, v8
    v_lshlrev_b32 v16, 6, v11
    v_sub_u32 v8, v8, v16
    v_add_u32 v8, {BB+448}, v8
    """)
    a(f"""
    v_lshlrev_b32 v17, 4, v9
    v_add_u32 v17, v17, v16
    v_lshl_add_u32 v17, v10, 3, v17
    v_sub_u32 v17, {BB+504}, v17
    """)
    a(f"""
    v_lshl_add_u32 v18, v11, 2, v9
    s_movk_i32 s17, 9216
    v_mul_u32_u24 v18, s17, v18
    v_lshl_add_u32 v18, v10, 3, v18
    s_lshl_b32 s18, s3, 4
    """)
    a(f"""
    v_sub_u32 v19, 3, v0
    v_lshlrev_b32 v19, 4, v19
    v_mul_u32_u24 v20, s16, v0
    s_waitcnt vmcnt(17)
    v_lshlrev_b64 v[4:5], v19, v[4:5]
    s_mov_b64 exec, 0xf
    ds_write_b64 v20, v[4:5] offset:56
    s_mov_b64 exec, -1
    """)
    if PREFETCH:
        srd(a, 40, 36, SZ_W)
        srd(a, 44, 38, SZ_W)
        srd(a, 48, 8, SZ_X)
        a(f"""
        s_mul_i32 s36, s12, 7282
        s_lshr_b32 s36, s36, 16
        s_mul_i32 s37, s36, 9
        s_sub_u32 s37, s12, s37
        s_mul_i32 s36, s36, {32*9216}
        s_lshl_b32 s37, s37, 12
        s_add_u32 s39, s36, s37
        s_and_b32 s37, s2, 7
        s_mul_i32 s38, s37, 1152
        s_mul_i32 s37, s37, 36864
        s_add_u32 s39, s39, s37
        v_lshlrev_b32 v26, 7, v0
        s_mul_i32 s36, s12, {WLANES}
        v_add_u32 v24, s36, v0
        v_mul_u32_u24 v25, 7282, v24
        v_lshrrev_b32 v25, 16, v25
        v_mul_u32_u24 v27, 9, v25
        v_sub_u32 v27, v24, v27
        v_mul_u32_u24 v25, s17, v25
        v_lshl_add_u32 v25, v27, 7, v25
        """)
    ACC = 32
    AF = 64
    NAF = 6
    BX = 88
    for i in range(32):
        a(f"v_mov_b32 v{ACC+i}, 0")
    def breg(q):
        qp = 56 - q
        return f"a[{4*qp}:{4*qp+3}]" if qp < 64 else f"v[{BX}:{BX+3}]"
    def bread(q):
        a(f"ds_read_b128 {breg(q)}, v8 offset:{64*(56-q)}")
    def areg(m):
        r = AF + 4 * (m % NAF)
        return f"v[{r}:{r+3}]"
    def aread(m):
        a(f"ds_read_b128 {areg(m)}, v7 offset:{64*m}")
    pend = []
    def issue(tag, fn):
        fn(); pend.append(tag)
    def wait_for(tags):
        idx = max([i for i, t in enumerate(pend) if t in tags], default=-1)
        if idx < 0: return
        n = len(pend) - 1 - idx
        a(f"s_waitcnt lgkmcnt({min(n,15)})")
        del pend[:idx + 1]
    pend += ['w0', 'w1']
    def bq_for(m):
        return [8 * T - m for T in range(8) if 8 * T - m >= -8]
    loaded = set()
    for q in bq_for(0):
        issue(('B', q), lambda q=q: bread(q)); loaded.add(q)
    stamp(a, 1)
    if STAMPS: pend.clear()
    a("s_waitcnt vmcnt(0)")
    stamp(a, 2)
    if PREFETCH:
        a("s_mov_b64 exec, 0xffffffff")
        a("buffer_load_dword v28, v26, s[48:51], s39 offen")
        if WLANES:
            a(f"s_mov_b32 exec_lo, {hex((1<<min(32,WLANES))-1)}")
            a(f"s_mov_b32 exec_hi, {hex((1<<max(0,WLANES-32))-1)}")
            a("buffer_load_dword v29, v25, s[40:43], s38 offen")
            a("buffer_load_dword v30, v25, s[44:47], s38 offen")
        a("s_mov_b64 exec, -1")
    for m in range(3):
        issue(('A', m), lambda m=m: aread(m))
    for m in range(65):
        pf = []
        if m + 1 <= 8:
            pf += [('B', q) for q in bq_for(m + 1) if q not in loaded]
        if m + 3 <= 64:
            pf.append(('A', m + 3))
        Ts = [T for T in range(8) if 8 * T - m >= -8]
        first = True
        for T in Ts:
            q = 8 * T - m
            wait_for({('A', m), ('B', q)})
            a(f"v_mfma_f32_16x16x32_bf16 v[{ACC+4*T}:{ACC+4*T+3}], {areg(m)}, {breg(q)}, v[{ACC+4*T}:{ACC+4*T+3}]")
            k = -(-len(pf) // max(1, (len(Ts) - Ts.index(T))))
            for _ in range(k):
                if len(pend) >= 14:
                    wait_for({pend[len(pend) - 13]})
                tag = pf.pop(0)
                if tag[0] == 'B':
                    issue(tag, lambda q=tag[1]: bread(q)); loaded.add(tag[1])
                else:
                    issue(tag, lambda mm=tag[1]: aread(mm))
    stamp(a, 3)
    KV = 64
    for T in range(8):
        a(f"ds_read_b64 v[{KV+2*T}:{KV+2*T+1}], v17 offset:{512*(7-T)}")
    a("v_lshlrev_b32 v6, 16, v6")
    a("s_mov_b32 s19, 0xffff0000")
    for T in range(8):
        a(f"s_waitcnt lgkmcnt({7-T})")
        k0, k1_ = KV + 2 * T, KV + 2 * T + 1
        t = 80 + 4 * (T & 1)
        a(f"v_and_b32 v{t}, s19, v{k1_}")
        a(f"v_lshlrev_b32 v{t+1}, 16, v{k1_}")
        a(f"v_and_b32 v{t+2}, s19, v{k0}")
        a(f"v_lshlrev_b32 v{t+3}, 16, v{k0}")
        for r in range(4):
            a(f"v_fmac_f32 v{ACC+4*T+r}, v6, v{t+r}")
        o = 20 + 2 * (T % 4)
        a(f"v_cvt_pk_bf16_f32 v{o}, v{ACC+4*T}, v{ACC+4*T+1}")
        a(f"v_cvt_pk_bf16_f32 v{o+1}, v{ACC+4*T+2}, v{ACC+4*T+3}")
        a(f"buffer_store_dwordx2 v[{o}:{o+1}], v18, s[32:35], s18 offen {ST2}")
        if T < 7:
            a(f"s_add_u32 s18, s18, 294912")
    stamp(a, 4)
    if STAMPS: a("s_waitcnt vmcnt(0)")
    stamp(a, 5)
    stamp_rt(a, 7)
    stamp_store(a, 8, 1, None, 10, 1)
    a.label('K2_done')
    a("s_endpgm")
    return a.finish() + kd('conv_kernel', 352, 56, 96)

K3_LDS = 9216 + 2 * 640
def k3():
    a = Asm()
    a.raw(khead('ln_kernel'))
    a(f"""
    s_cmp_ge_u32 s2, 256
    s_cbranch_scc1 K3_done
    """)
    stamp_rt(a, 6)
    stamp(a, 0)
    a(f"""
    s_load_dwordx2 s[4:5], s[0:1], {KA['q']}
    s_load_dwordx2 s[10:11], s[0:1], {KA['ws']}
    v_lshrrev_b32 v1, 6, v0
    v_and_b32 v2, 63, v0
    v_readfirstlane_b32 s3, v1
    v_and_b32 v3, 7, v0
    v_lshrrev_b32 v4, 3, v0
    s_lshl_b32 s12, s2, 3
    v_add_u32 v5, s12, v3
    s_movk_i32 s13, 1152
    v_mul_u32_u24 v5, s13, v5
    v_lshl_add_u32 v5, v4, 4, v5
    v_lshlrev_b32 v6, 4, v0
    s_mul_i32 s14, s2, 9216
    s_lshl_b32 s15, s3, 10
    s_waitcnt lgkmcnt(0)
    """)
    srd(a, 20, 4, SZ_X)
    srd(a, 24, 10, SZ_ZB, WS_ZB)
    srd(a, 28, 10, SZ_H, WS_H)
    srd(a, 32, 10, SZ_HN, WS_HN)
    a(f"""
    buffer_load_dwordx4 v[8:11], v5, s[20:23], 0 offen
    s_mov_b32 m0, s15
    buffer_load_dwordx4 v6, s[24:27], s14 offen lds
    """)
    a(f"""
    v_lshrrev_b32 v7, 4, v2
    v_lshlrev_b32 v7, 8, v7
    v_bfe_u32 v12, v2, 1, 1
    v_lshl_add_u32 v7, v12, 7, v7
    v_bfe_u32 v12, v2, 2, 2
    v_lshl_add_u32 v7, v12, 4, v7
    v_and_b32 v12, 1, v2
    v_lshl_add_u32 v7, v12, 3, v7
    v_add_u32 v7, s15, v7
    """)
    a(f"""
    s_lshr_b32 s16, s2, 2
    s_mul_i32 s16, s16, {36*1024}
    s_and_b32 s17, s2, 3
    s_lshl_b32 s17, s17, 7
    s_add_u32 s16, s16, s17
    v_lshrrev_b32 v12, 1, v4
    v_lshlrev_b32 v12, 10, v12
    v_and_b32 v13, 1, v4
    v_lshl_add_u32 v12, v13, 9, v12
    v_lshl_add_u32 v12, v3, 4, v12
    """)
    a(f"""
    v_mul_u32_u24 v13, 80, v3
    v_add_u32 v13, 9216, v13
    s_lshl_b32 s17, s3, 3
    v_add_u32 v14, s17, v13
    s_mov_b32 s18, 0xffff0000
    s_mov_b32 s19, {f32(1.0/576)}
    s_mov_b32 s36, {f32(1e-5)}
    s_waitcnt vmcnt(1)
    """)
    stamp(a, 1)
    X = 16
    for j in range(4):
        a(f"v_lshlrev_b32 v{X+2*j}, 16, v{8+j}")
        a(f"v_and_b32 v{X+2*j+1}, s18, v{8+j}")
    def stats(src, ldsoff, tag):
        a(f"v_add_f32 v32, v{src}, v{src+1}")
        a(f"v_mul_f32 v33, v{src}, v{src}")
        a(f"v_fmac_f32 v33, v{src+1}, v{src+1}")
        for j in range(2, 8):
            a(f"v_add_f32 v32, v32, v{src+j}")
            a(f"v_fmac_f32 v33, v{src+j}, v{src+j}")
        a("v_add_f32_dpp v32, v32, v32 row_ror:8 row_mask:0xf bank_mask:0xf")
        a("v_add_f32_dpp v33, v33, v33 row_ror:8 row_mask:0xf bank_mask:0xf")
        a("v_mov_b32 v34, v32")
        a("v_mov_b32 v35, v33")
        a("v_permlane16_swap_b32 v32, v34")
        a("v_permlane16_swap_b32 v33, v35")
        a("v_add_f32 v32, v32, v34")
        a("v_add_f32 v33, v33, v35")
        a("v_mov_b32 v34, v32")
        a("v_mov_b32 v35, v33")
        a("v_permlane32_swap_b32 v32, v34")
        a("v_permlane32_swap_b32 v33, v35")
        a("v_add_f32 v32, v32, v34")
        a("v_add_f32 v33, v33, v35")
        a("s_mov_b64 exec, 0xff")
        a(f"ds_write_b64 v14, v[32:33] offset:{ldsoff}")
        a("s_mov_b64 exec, -1")
        a("s_waitcnt lgkmcnt(0)")
        a("s_barrier")
        for j in range(4):
            a(f"ds_read_b128 v[{44+4*j}:{47+4*j}], v13 offset:{ldsoff+16*j}")
        a(f"ds_read_b64 v[60:61], v13 offset:{ldsoff+64}")
        a("s_waitcnt lgkmcnt(0)")
        a("v_pk_add_f32 v[44:45], v[44:45], v[46:47]")
        a("v_pk_add_f32 v[48:49], v[48:49], v[50:51]")
        a("v_pk_add_f32 v[52:53], v[52:53], v[54:55]")
        a("v_pk_add_f32 v[56:57], v[56:57], v[58:59]")
        a("v_pk_add_f32 v[44:45], v[44:45], v[48:49]")
        a("v_pk_add_f32 v[52:53], v[52:53], v[56:57]")
        a("v_pk_add_f32 v[44:45], v[44:45], v[60:61]")
        a("v_pk_add_f32 v[44:45], v[44:45], v[52:53]")
        a("v_mul_f32 v40, s19, v44")
        a("v_mul_f32 v41, s19, v45")
        a("v_fma_f32 v41, -v40, v40, v41")
        a("v_max_f32 v41, 0, v41")
        a("v_cvt_pk_bf16_f32 v42, v40, v41")
        a("v_lshlrev_b32 v40, 16, v42")
        a("v_and_b32 v41, s18, v42")
        a("v_add_f32 v41, s36, v41")
        a("v_cvt_pk_bf16_f32 v41, v41, v41")
        a("v_and_b32 v41, s18, v41")
        a("v_sqrt_f32 v41, v41")
        a("v_cvt_pk_bf16_f32 v41, v41, v41")
        a("v_and_b32 v41, s18, v41")
        a("v_rcp_f32 v41, v41")
    stats(X, 0, 'a')
    stamp(a, 2)
    a("s_waitcnt vmcnt(0)")
    stamp(a, 3)
    a("ds_read_b64_tr_b16 v[36:37], v7")
    a("ds_read_b64_tr_b16 v[38:39], v7 offset:64")
    Hh = 24
    for j in range(8):
        a(f"v_sub_f32 v{Hh+j}, v{X+j}, v40")
    for j in range(8):
        a(f"v_mul_f32 v{Hh+j}, v{Hh+j}, v41")
    a("s_waitcnt lgkmcnt(0)")
    for j in range(4):
        a(f"v_lshlrev_b32 v{44+2*j}, 16, v{36+j}")
        a(f"v_and_b32 v{45+2*j}, s18, v{36+j}")
    for j in range(8):
        a(f"v_fma_f32 v{Hh+j}, v{Hh+j}, v{44+j}, v{X+j}")
    for j in range(4):
        a(f"v_cvt_pk_bf16_f32 v{8+j}, v{Hh+2*j}, v{Hh+2*j+1}")
    a(f"buffer_store_dwordx4 v[8:11], v5, s[28:31], 0 offen sc1")
    for j in range(4):
        a(f"v_lshlrev_b32 v{X+2*j}, 16, v{8+j}")
        a(f"v_and_b32 v{X+2*j+1}, s18, v{8+j}")
    stats(X, 640, 'b')
    for j in range(8):
        a(f"v_sub_f32 v{Hh+j}, v{X+j}, v40")
    for j in range(8):
        a(f"v_mul_f32 v{Hh+j}, v{Hh+j}, v41")
    for j in range(4):
        a(f"v_cvt_pk_bf16_f32 v{36+j}, v{Hh+2*j}, v{Hh+2*j+1}")
    a(f"buffer_store_dwordx4 v[36:39], v12, s[32:35], s16 offen sc1")
    stamp(a, 4)
    if STAMPS: a("s_waitcnt vmcnt(0)")
    stamp(a, 5)
    stamp_rt(a, 7)
    stamp_store(a, 8, 2, 3, 10, 9)
    a.label('K3_done')
    a("s_endpgm")
    return a.finish() + kd('ln_kernel', 64, 40, 64)

HEADER = """; sequential_preLN -> ssm_conv_h3 -> glu_gated_geglu : multi-kernel pipeline (generated by dev/gen.py)
"""
def build(kernels):
    launches = {
        'k1': "; @launch kernel=prep_kernel grid=(576,1,1) block=(64,1,1) lds=0",
        'k2': f"; @launch kernel=conv_kernel grid=(576,1,1) block=(64,1,1) lds={K2_LDS}",
        'k3': f"; @launch kernel=ln_kernel grid=(256,1,1) block=(576,1,1) lds={K3_LDS}",
    }
    try:
        import gen_gemm
        launches.update(gen_gemm.launches())
        import gen_kb
        launches.update(gen_kb.launches())
        fns = dict(k1=k1, k2=k2, k3=k3, **gen_gemm.fns(), **gen_kb.fns())
    except ImportError:
        fns = dict(k1=k1, k2=k2, k3=k3)
    s = HEADER
    for k in kernels: s += launches[k] + '\n'
    s += '.amdgcn_target "amdgcn-amd-amdhsa--gfx950"\n.text\n'
    for k in dict.fromkeys(kernels): s += fns[k]()
    s += 'TEXT_END:\n'
    return s

if __name__ == '__main__':
    ks = sys.argv[2:] if len(sys.argv) > 2 else ['k1', 'k2', 'kb']
    open(sys.argv[1], 'w').write(build(ks))
```
